```python
import torch

def _softmax(x, axis=-1):
    return torch.softmax(x, dim=axis)
def _gelu(x):
    return torch.nn.functional.gelu(x, approximate="tanh")
def _silu(x):
    return torch.nn.functional.silu(x)
def _sigmoid(x):
    return torch.sigmoid(x)
def _layernorm(x, axis=-1, eps=1e-5):
    m = x.mean(dim=axis, keepdim=True)
    v = x.var(dim=axis, keepdim=True, unbiased=False)
    return (x - m) / torch.sqrt(v + eps)
def _scatter_add(tgt, idx, src, axis=0):
    return tgt.clone().index_add_(axis, idx, src)
def _segment_sum(src, seg, n):
    out = torch.zeros((n,) + src.shape[1:], dtype=src.dtype)
    return out.index_add_(0, seg, src)
def _pad(x, pw):
    flat = tuple(v for pair in reversed(pw) for v in pair)
    return torch.nn.functional.pad(x, flat)

kernel_name = 'gated_mix__spectral_gfnet__dense_activation_gelu__prompt'

def setup_inputs():

    _w = (lambda a: (lambda t: t.to(torch.bfloat16) if t.is_floating_point() else t)(torch.as_tensor(a)))
    def _A_setup():
        B, S, D = 1, 2048, 512
        Df = D // 2 + 1
        return {
            "x": _w((lambda *s: torch.randn(*s, dtype=torch.bfloat16) * 0.05)(B, S, D)),
            "w_r": _w((lambda *s: torch.randn(*s, dtype=torch.bfloat16) * 1.6)(S, Df) * 0.02),
            "w_i": _w((lambda *s: torch.randn(*s, dtype=torch.bfloat16) * 1.6)(S, Df) * 0.02),
        }
    _A_in = _A_setup()

    def _B_setup():
        B, S, D, F = 1, 2048, 512, 1376
        return {
            "x": _w((lambda *s: torch.randn(*s, dtype=torch.bfloat16) * 0.05)(B, S, D)),
            "w1": _w((lambda *s: torch.randn(*s, dtype=torch.bfloat16) * 3.2)(D, F) * (D ** -0.5)),
            "b1": _w((lambda *s: torch.randn(*s, dtype=torch.bfloat16) * 3.2)(F) * 0.01),
            "w2": _w((lambda *s: torch.randn(*s, dtype=torch.bfloat16) * 0.05)(F, D) * (F ** -0.5)),
            "b2": _w((lambda *s: torch.randn(*s, dtype=torch.bfloat16) * 0.1)(D) * 0.01),
        }
    _B_in = _B_setup()

    return {
        "A_x": _A_in["x"],
        "A_w_r": _A_in["w_r"],
        "A_w_i": _A_in["w_i"],
        "B_x": _B_in["x"],
        "B_w1": _B_in["w1"],
        "B_b1": _B_in["b1"],
        "B_w2": _B_in["w2"],
        "B_b2": _B_in["b2"],
        "gate_w": _w((lambda *s: torch.randn(*s, dtype=torch.bfloat16) * 0.05)(512) * 16.0),
    }

def reference(A_x, A_w_r, A_w_i, B_x, B_w1, B_b1, B_w2, B_b2, gate_w):
    def _A_ref(x, w_r, w_i):
        B, S, D = x.shape
        X = (lambda x, axes=(-2,-1): torch.fft.rfft2(x.float(), dim=axes))(x, axes=(-2, -1))
        W = w_r + 1j * w_i
        X = X * W
        y = (lambda x, s, axes=(-2,-1): torch.fft.irfft2(x, s=s, dim=axes).to(torch.bfloat16))(X, (S, D), axes=(-2, -1))
        return y

    def _B_ref(x, w1, b1, w2, b2):
        h = torch.einsum("bsd,df->bsf", x, w1) + b1
        h = _gelu(h)
        return torch.einsum("bsf,fd->bsd", h, w2) + b2

    x = A_x
    g = _sigmoid((x * gate_w).sum(-1, keepdims=True))
    a = _A_ref(x, A_w_r, A_w_i)
    b = _B_ref(x, B_w1, B_b1, B_w2, B_b2)
    return g * a + (1 - g) * b
```

```python
from common import *
from b2 import decode_pt
import struct
def f2u(x): return struct.unpack('<I', struct.pack('<f', x))[0]

def swz128_dma(a, vdst, vL, t0, t1, t2, par, rowstride):
    a(f"v_lshrrev_b32 v{t0}, 3, v{vL}")
    a(f"v_bfe_u32 v{t1}, v{t0}, 1, 1")
    if par: a(f"v_or_b32 v{t1}, 2, v{t1}")
    a(f"v_bfe_u32 v{t2}, v{vL}, 1, 2")
    a(f"v_xor_b32 v{t1}, v{t1}, v{t2}")
    a(f"v_lshlrev_b32 v{t1}, 5, v{t1}")
    a(f"v_and_b32 v{t2}, 1, v{vL}")
    a(f"v_lshl_add_u32 v{t1}, v{t2}, 4, v{t1}")
    a(f"v_mul_u32_u24 v{t0}, {rowstride}, v{t0}")
    a(f"v_add_u32 v{vdst}, v{t0}, v{t1}")

def tr128_base(a, vdst, vG, vN, t0, t1, t2):
    a(f"v_lshrrev_b32 v{t0}, 2, v{vN}")
    a(f"v_lshl_add_u32 v{t1}, v{vG}, 3, v{t0}")
    a(f"v_lshlrev_b32 v{t1}, 7, v{t1}")
    a(f"v_lshrrev_b32 v{t0}, 1, v{t0}")
    a(f"v_and_b32 v{t2}, 1, v{vG}")
    a(f"v_lshl_add_u32 v{t0}, v{t2}, 1, v{t0}")
    a(f"v_lshl_add_u32 v{t1}, v{t0}, 5, v{t1}")
    a(f"v_and_b32 v{t0}, 3, v{vN}")
    a(f"v_lshl_add_u32 v{vdst}, v{t0}, 3, v{t1}")

def gen_A1(a, LA=0, sc=" sc1", barrier=lambda a: a("s_barrier"), full_lines=False, gate_wave=0):
    sW = 3
    sP, sT, sA, sB, sC = 20, 21, 22, 23, 24
    vL = 0; vG, vN = 1, 2
    vD = [3, 4]
    t0, t1, t2, t3 = 5, 6, 7, 8
    vT = [9, 10, 11, 12]
    vS = 13
    vXg = [14, 15]
    F = 16
    gwf = 24
    xf = 32
    acc = 64
    gx = 80
    gacc = 112
    decode_pt(a, sP, sT, sA)
    lane_decomp(a, vL, vG, vN)
    for par in range(2):
        swz128_dma(a, vD[par], vL, t0, t1, t2, par, 32768)
    a(f"s_lshl_b32 s{sA}, s{sP}, 10")
    a(f"s_lshl_b32 s{sB}, s{sT}, 7")
    a(f"s_add_u32 s{sA}, s{sA}, s{sB}")
    a(f"s_lshl_b32 s{sB}, s{sW}, 19")
    a(f"s_add_u32 s{sB}, s{sB}, s{sA}")
    a(f"s_lshl_b32 s{sC}, s{sW}, 11")
    if LA: a(f"s_add_u32 s{sC}, s{sC}, {LA}")
    a(f"s_mov_b32 m0, s{sC}")
    a(f"buffer_load_dwordx4 v{vD[0]}, s[4:7], s{sB} offen lds")
    a(f"s_add_u32 m0, s{sC}, 1024")
    a(f"s_add_u32 s{sB}, s{sB}, {8*32768}")
    a(f"buffer_load_dwordx4 v{vD[1]}, s[4:7], s{sB} offen lds")
    stamp(a, 9)
    a(f"v_lshlrev_b32 v{t0}, 4, v{vG}")
    a(f"s_lshl_b32 s{sB}, s{sT}, 7")
    for ks in range(2):
        a(f"buffer_load_dwordx4 v[{gwf+4*ks}:{gwf+4*ks+3}], v{t0}, s[16:19], s{sB} offen offset:{64*ks}")
    a(f"s_lshl_b32 s{sB}, s{sW}, 4")
    a(f"v_add_u32 v{t0}, s{sB}, v{vN}")
    a(f"v_subrev_u32 v{t1}, 32, v{t0}")
    a(f"v_cmp_lt_u32 vcc, 32, v{t0}")
    a(f"v_cndmask_b32 v{t0}, v{t0}, v{t1}, vcc")
    a(f"v_cvt_f32_u32 v{t0}, v{t0}")
    a(f"v_mul_f32 v{t0}, 0x{f2u(1/64):08x}, v{t0}")
    a(f"v_mov_b32 v{t1}, 0")
    a(f"v_mov_b32 v{t2}, 0x{f2u(-0.25):08x}")
    a(f"v_cndmask_b32 v{t1}, v{t1}, v{t2}, vcc")
    a(f"v_lshlrev_b32 v{t2}, 3, v{vG}")
    a(f"v_cvt_f32_u32 v{t2}, v{t2}")
    a(f"v_fma_f32 v{t1}, v{t2}, v{t0}, v{t1}")
    tmp = xf
    for ks in range(2):
        for e in range(8):
            k = 32*ks + e
            if k == 0: a(f"v_cos_f32 v{tmp}, v{t1}")
            else:
                a(f"v_fmamk_f32 v{tmp+ks*8+e}, v{t0}, 0x{f2u(float(k)):08x}, v{t1}")
                a(f"v_cos_f32 v{tmp+ks*8+e}, v{tmp+ks*8+e}")
    for ks in range(2):
        for h in range(4):
            a(f"v_cvt_pk_bf16_f32 v{F+4*ks+h}, v{tmp+ks*8+2*h}, v{tmp+ks*8+2*h+1}")
    stamp(a, 10)
    tr128_base(a, t3, vG, vN, t0, t1, t2)
    for mt in range(4):
        a(f"v_xor_b32 v{vT[mt]}, {mt*32}, v{t3}")
        if LA: a(f"v_add_u32 v{vT[mt]}, {LA}, v{vT[mt]}")
    a(f"v_bfe_u32 v{t0}, v{vN}, 1, 1")
    a(f"v_bfe_u32 v{t1}, v{vN}, 3, 1")
    a(f"v_lshl_add_u32 v{t0}, v{t1}, 1, v{t0}")
    a(f"v_lshrrev_b32 v{t1}, 1, v{vG}")
    a(f"v_xor_b32 v{t0}, v{t0}, v{t1}")
    a(f"v_lshlrev_b32 v{t0}, 5, v{t0}")
    a(f"v_and_b32 v{t1}, 1, v{vG}")
    a(f"v_lshl_add_u32 v{t0}, v{t1}, 4, v{t0}")
    a(f"v_lshl_add_u32 v{vXg[0]}, v{vN}, 7, v{t0}")
    if LA: a(f"v_add_u32 v{vXg[0]}, {LA}, v{vXg[0]}")
    a(f"v_xor_b32 v{vXg[1]}, 64, v{vXg[0]}")
    a(f"v_and_b32 v{t0}, 1, v{vG}")
    a(f"v_lshlrev_b32 v{t0}, 5, v{t0}")
    a(f"v_lshrrev_b32 v{t1}, 1, v{vG}")
    a(f"v_lshl_add_u32 v{t0}, v{t1}, 4, v{t0}")
    if not full_lines:
        a(f"v_lshl_add_u32 v{vS}, v{vN}, 15, v{t0}")
    else:
        a(f"v_and_b32 v{t1}, 7, v{vN}")
        a(f"v_lshl_add_u32 v{t0}, v{t1}, 15, v{t0}")
        a(f"v_lshrrev_b32 v{t1}, 3, v{vN}")
        a(f"v_lshl_add_u32 v{vS}, v{t1}, 6, v{t0}")
    a(f"s_lshl_b32 s{sB}, s{sW}, 19")
    a(f"s_add_u32 s{sB}, s{sB}, s{sA}")
    if WS_U: a(f"s_add_u32 s{sB}, s{sB}, {WS_U}")
    stamp(a, 2)
    a("s_waitcnt vmcnt(0)")
    barrier(a)
    stamp(a, 3)
    for mt in range(4):
        for ks in range(2):
            for h in range(2):
                r = xf + 8*mt + 4*ks + 2*h
                a(f"ds_read_b64_tr_b16 v[{r}:{r+1}], v{vT[mt]} offset:{ks*4096 + h*512}")
    lab = a.newlabel("A1g")
    a.fence()
    a(f"s_cmp_lg_u32 s{sW}, {gate_wave}")
    a(f"s_cbranch_scc1 {lab}")
    for nt in range(4):
        for ks in range(2):
            r = gx + 8*nt + 4*ks
            a(f"ds_read_b128 v[{r}:{r+3}], v{vXg[ks]} offset:{nt*2048}")
    a("s_waitcnt lgkmcnt(0)")
    for ks in range(2):
        for nt in range(4):
            d = gacc + 4*nt; r = gx + 8*nt + 4*ks
            c = "0" if ks == 0 else f"v[{d}:{d+3}]"
            a(f"v_mfma_f32_16x16x32_bf16 v[{d}:{d+3}], v[{gwf+4*ks}:{gwf+4*ks+3}], v[{r}:{r+3}], {c}")
    for nt in range(1, 4):
        a(f"v_mov_b32 v{gacc+nt}, v{gacc+4*nt}")
    a(f"s_lshl_b32 s{sC}, s{sP}, 3")
    a(f"s_add_u32 s{sC}, s{sC}, s{sT}")
    a(f"s_lshl_b32 s{sC}, s{sC}, 8")
    a(f"s_add_u32 s{sC}, s{sC}, {WS_GL}")
    a(f"v_lshlrev_b32 v{t0}, 4, v{vN}")
    a("s_mov_b64 exec, 0xffff")
    a(f"buffer_store_dwordx4 v[{gacc}:{gacc+3}], v{t0}, s[12:15], s{sC} offen{sc}")
    a("s_mov_b64 exec, -1")
    a.fence()
    a.label(lab)
    a("s_waitcnt lgkmcnt(0)")
    for ks in range(2):
        for mt in range(4):
            d = acc + 4*mt; r = xf + 8*mt + 4*ks
            c = "0" if ks == 0 else f"v[{d}:{d+3}]"
            a(f"v_mfma_f32_16x16x32_bf16 v[{d}:{d+3}], v[{r}:{r+3}], v[{F+4*ks}:{F+4*ks+3}], {c}")
    pk = xf
    for mt in range(4):
        for h in range(2):
            r = pk + 4*(mt >> 1) + 2*(mt & 1) + h
            a(f"v_cvt_pk_bf16_f32 v{r}, v{acc+4*mt+2*h}, v{acc+4*mt+2*h+1}")
    for pair in range(2):
        b = pk + 4*pair
        a(f"v_permlane16_swap_b32 v{b}, v{b+2}")
        a(f"v_permlane16_swap_b32 v{b+1}, v{b+3}")
    if not full_lines:
        for pair in range(2):
            b = pk + 4*pair
            a(f"buffer_store_dwordx4 v[{b}:{b+3}], v{vS}, s[12:15], s{sB} offen offset:{pair*64}{sc}")
    else:
        X = pk; Y = pk + 4; Yr = pk + 8; SA = pk + 12; SB = pk + 16
        a(f"v_cmp_gt_u32 vcc, 8, v{vN}")
        for i in range(4):
            a(f"v_mov_b32_dpp v{Yr+i}, v{Y+i} row_ror:8 row_mask:0xf bank_mask:0xf")
        for i in range(4):
            a(f"v_cndmask_b32 v{SA+i}, v{Yr+i}, v{X+i}, vcc")
            a(f"v_cndmask_b32 v{SB+i}, v{X+i}, v{Yr+i}, vcc")
        a(f"buffer_store_dwordx4 v[{SA}:{SA+3}], v{vS}, s[12:15], s{sB} offen{sc}")
        a(f"v_xor_b32 v{vS}, 64, v{vS}")
        a(f"s_add_u32 s{sB}, s{sB}, {8*32768}")
        a(f"buffer_store_dwordx4 v[{SB}:{SB+3}], v{vS}, s[12:15], s{sB} offen{sc}")
    return dict(nv=128, sP=sP, sT=sT)

def kernel_A1(name, prof=False, **kw):
    a = HAsm(); a.prof = prof
    a("s_cmp_ge_u32 s2, 256")
    a(f"s_cbranch_scc1 L_{name}_end")
    stamp(a, 0, real=True); stamp(a, 1)
    load_srd(a, 4, "xA"); load_srd(a, 12, "ws"); load_srd(a, 16, "gw")
    wave_id(a, 3, 1)
    a("s_waitcnt lgkmcnt(0)")
    stamp(a, 8)
    fin_srd(a, 4, "xA"); fin_srd(a, 12, "ws", WS_SIZE); fin_srd(a, 16, "gw")
    r = gen_A1(a, **kw)
    stamp(a, 5)
    if prof: a("s_waitcnt vmcnt(0)")
    stamp(a, 6); stamp(a, 7, real=True)
    dump_stamps(a, 11)
    a.fence()
    a.label(f"L_{name}_end")
    a("s_endpgm")
    return (name, a.text(), r['nv'], 0, 100), 8192

if __name__ == "__main__":
    for fl in (False, True):
        k, lds = kernel_A1(KNAME, prof=True, full_lines=fl)
        open(f"a1_{int(fl)}.s", "w").write(build_file([k], [(KNAME, 256, 256, lds)]))
        print("lds", lds, "vgprs", k[2], "lines", k[1].count("\n"))
```

```python
from common import *
from b2 import decode_pt
from a1 import f2u

class A2:
    sQ, sJ, sA, sB, sC, sKA, sKap, sPass = 20, 21, 22, 23, 24, 25, 26, 27
    sEta = 28
    vL, vG, vN = 0, 1, 2
    t0, t1, t2, t3 = 3, 4, 5, 6
    vMu, vNMu = 7, 8
    vX = [9, 10, 11, 12]
    vS = 13
    vDm = [14, 15, 224, 225]
    SET2 = 16
    T = 64
    XF = 128
    ACC = 160
    SET1 = 176
    SAVE = 226
    NV = 240
    def __init__(self, a, LU=0, LW=65536, LW2=65536+8192, LF=65536+16384, sc=" sc1", ld_sc=" sc1", barrier=None):
        self.a = a; self.LU = LU; self.LW = LW; self.LW2 = LW2; self.LF = LF; self.sc = sc; self.ld_sc = ld_sc
        self.barrier = barrier or (lambda a: a("s_barrier"))

    def decode(self):
        a = self.a
        decode_pt(a, self.sQ, self.sJ, self.sA)
        lane_decomp(a, self.vL, self.vG, self.vN)

    def w_dma(self):
        a = self.a; t0, t1, t2, t3 = self.t0, self.t1, self.t2, self.t3
        sW = 3
        def one(ska, lds):
            a(f"v_lshrrev_b32 v{t0}, 2, v{self.vL}")
            a(f"v_lshlrev_b32 v{t0}, 6, v{t0}")
            a(f"v_add_u32 v{t0}, {ska}, v{t0}")
            a(f"v_and_b32 v{t1}, 3, v{self.vL}")
            a(f"v_xor_b32 v{t1}, v{t1}, v{self.vG}")
            a(f"v_lshlrev_b32 v{t1}, 4, v{t1}")
            a(f"s_lshl_b32 s{self.sA}, s{self.sJ}, 6")
            a(f"v_add_u32 v{t1}, s{self.sA}, v{t1}")
            a(f"s_lshl_b32 s{self.sB}, s{sW}, 11")
            a(f"s_add_u32 s{self.sB}, s{self.sB}, {lds}")
            a(f"s_cmp_ge_u32 s{sW}, 2")
            a(f"s_cselect_b64 vcc, -1, 0")
            lab_i = a.newlabel("A2wi"); lab_e = a.newlabel("A2we")
            for kt in range(2):
                a(f"v_add_u32 v{t2}, {1024*kt}, v{t0}")
                a(f"v_sub_u32 v{t3}, 2048, v{t2}")
                a(f"v_and_b32 v{t3}, 2047, v{t3}")
                a(f"v_cndmask_b32 v{t2}, v{t2}, v{t3}, vcc")
                a(f"v_mul_u32_u24 v{t2}, 514, v{t2}")
                a(f"v_add_u32 v{self.vDm[kt]}, v{t2}, v{t1}")
            a(f"s_add_u32 s{self.sC}, s{sW}, 1")
            a(f"s_bitcmp1_b32 s{self.sC}, 1")
            a.fence()
            a(f"s_cbranch_scc1 {lab_i}")
            for kt in range(2):
                a(f"s_add_u32 m0, s{self.sB}, {kt*1024}")
                a(f"buffer_load_dwordx4 v{self.vDm[kt]}, s[4:7], 0 offen lds")
            a(f"s_branch {lab_e}")
            a.label(lab_i)
            for kt in range(2):
                a(f"s_add_u32 m0, s{self.sB}, {kt*1024}")
                a(f"buffer_load_dwordx4 v{self.vDm[kt]}, s[8:11], 0 offen lds")
            a.fence()
            a.label(lab_e)
        one(f"s{self.sQ}", self.LW)
        lab = a.newlabel("A2w2")
        a(f"s_cmp_lg_u32 s{self.sQ}, 0")
        a(f"s_cbranch_scc1 {lab}")
        a(f"s_mov_b32 s{self.sKA}, 32")
        one(f"s{self.sKA}", self.LW2)
        a.fence()
        a.label(lab)

    def table(self):
        a = self.a; t0, t1, t2, t3 = self.t0, self.t1, self.t2, self.t3
        sW = 3
        a(f"s_lshl_b32 s{self.sA}, s{self.sJ}, 5")
        a(f"s_lshl_b32 s{self.sB}, s{sW}, 3")
        a(f"s_add_u32 s{self.sA}, s{self.sA}, s{self.sB}")
        a(f"v_lshrrev_b32 v{t0}, 1, v{self.vN}")
        a(f"v_add_u32 v{t0}, s{self.sA}, v{t0}")
        a(f"v_cmp_eq_u32 vcc, 0, v{t0}")
        a(f"v_mov_b32 v{t1}, 1.0")
        a(f"v_cndmask_b32_e64 v{self.vMu}, 1.0, 0, vcc")
        a(f"v_cndmask_b32_e64 v{self.vNMu}, -1.0, 0, vcc")
        a(f"v_cvt_f32_u32 v{t0}, v{t0}")
        a(f"v_mul_f32 v{t0}, 0x{f2u(1/512):08x}, v{t0}")
        a(f"v_and_b32 v{t1}, 1, v{self.vN}")
        a(f"v_cvt_f32_u32 v{t2}, v{t1}")
        a(f"v_mul_f32 v{t2}, 0x{f2u(-0.25):08x}, v{t2}")
        a(f"v_cvt_f32_u32 v{t1}, v{t1}")
        a(f"v_cndmask_b32_e64 v{t1}, 0, v{t1}, vcc")
        a(f"v_fma_f32 v{t0}, v{t1}, 0.5, v{t0}")
        a(f"v_mul_f32 v{t3}, 0x{f2u(0.25):08x}, v{t1}")
        a(f"v_add_f32 v{t2}, v{t2}, v{t3}")
        a(f"v_lshlrev_b32 v{t1}, 3, v{self.vG}")
        a(f"v_cvt_f32_u32 v{t1}, v{t1}")
        a(f"v_fma_f32 v{t2}, v{t1}, v{t0}, v{t2}")
        self.cheb_table(self.T, t0, lambda e: t2, 32.0, lambda e: float(e))

    def cheb_table(self, T, vf, argsel, step, efun):
        a = self.a
        A = self.XF; B = self.XF + 8; K2 = self.XF + 16
        a(f"v_mul_f32 v{K2}, 0x{f2u(step):08x}, v{vf}")
        a(f"v_cos_f32 v{K2}, v{K2}")
        for e in range(8):
            for bank, off in ((A, 0.0), (B, step)):
                k = efun(e) + off
                if k == 0: a(f"v_cos_f32 v{bank+e}, v{argsel(e)}")
                else:
                    a(f"v_fmamk_f32 v{bank+e}, v{vf}, 0x{f2u(k):08x}, v{argsel(e)}")
                    a(f"v_cos_f32 v{bank+e}, v{bank+e}")
        a(f"v_add_f32 v{K2}, v{K2}, v{K2}")
        self.patch_seed(A, B)
        for ks in range(16):
            cur = A if ks % 2 == 0 else B
            oth = B if ks % 2 == 0 else A
            if ks >= 2:
                for e in range(8):
                    a(f"v_fma_f32 v{cur+e}, v{K2}, v{oth+e}, -v{cur+e}")
            self.pack_ks(T, ks, cur)
    def patch_seed(self, A, B): pass
    def pack_ks(self, T, ks, cur):
        for h in range(4):
            self.a(f"v_cvt_pk_bf16_f32 v{T+4*ks+h}, v{cur+2*h}, v{cur+2*h+1}")

    def mmats(self, base, ska):
        a = self.a; t0, t1, t2, t3 = self.t0, self.t1, self.t2, self.t3
        tc = self.XF; ts = self.XF + 8; ar = self.XF + 16
        ce = [16*(e >> 2) + (e & 3) for e in range(8)]
        a(f"v_lshlrev_b32 v{t3}, 2, v{self.vG}")
        a(f"v_cvt_f32_u32 v{t3}, v{t3}")
        for kt in range(2):
            a(f"v_lshlrev_b32 v{t0}, 6, v{self.vN}")
            a(f"v_add_u32 v{t0}, {ska}, v{t0}")
            if kt: a(f"v_add_u32 v{t0}, 1024, v{t0}")
            a(f"v_cvt_f32_u32 v{t0}, v{t0}")
            a(f"v_mul_f32 v{t0}, 0x{f2u(1/2048):08x}, v{t0}")
            a(f"v_mul_f32 v{t1}, v{t0}, v{t3}")
            for e in range(8):
                if ce[e] == 0: src = t1
                else:
                    a(f"v_fmamk_f32 v{ar+e}, v{t0}, 0x{f2u(float(ce[e])):08x}, v{t1}"); src = ar + e
                a(f"v_cos_f32 v{tc+e}, v{src}")
                a(f"v_sin_f32 v{ts+e}, v{src}")
            for h in range(4):
                a(f"v_cvt_pk_bf16_f32 v{base+4*kt+h}, v{tc+2*h}, v{tc+2*h+1}")
                a(f"v_cvt_pk_bf16_f32 v{base+8+4*kt+h}, v{ts+2*h}, v{ts+2*h+1}")
        for nt in range(2):
            a(f"v_add_u32 v{t0}, {16*nt}, v{self.vN}")
            a(f"v_mul_u32_u24 v{t1}, {ska}, v{t0}")
            a(f"v_cvt_f32_u32 v{t1}, v{t1}")
            a(f"v_mul_f32 v{t1}, 0x{f2u(1/2048):08x}, v{t1}")
            a(f"v_cvt_f32_u32 v{t0}, v{t0}")
            a(f"v_mul_f32 v{t0}, 0x{f2u(1/32):08x}, v{t0}")
            a(f"v_fma_f32 v{t1}, v{t0}, v{t3}, v{t1}")
            for e in range(8):
                if ce[e] == 0: src = t1
                else:
                    a(f"v_fmamk_f32 v{ar+e}, v{t0}, 0x{f2u(float(ce[e])):08x}, v{t1}"); src = ar + e
                a(f"v_cos_f32 v{tc+e}, v{src}")
                a(f"v_sin_f32 v{ts+e}, v{src}")
            for h in range(4):
                a(f"v_cvt_pk_bf16_f32 v{base+16+4*nt+h}, v{tc+2*h}, v{tc+2*h+1}")
                a(f"v_cvt_pk_bf16_f32 v{base+24+4*nt+h}, v{ts+2*h}, v{ts+2*h+1}")

    def w_read(self, W, lds, ska, seta):
        a = self.a; t0, t1, t2, t3 = self.t0, self.t1, self.t2, self.t3
        sW = 3
        a(f"v_and_b32 v{t0}, 1, v{self.vN}")
        a(f"v_lshlrev_b32 v{t0}, 12, v{t0}")
        a(f"v_lshl_add_u32 v{t0}, v{self.vG}, 8, v{t0}")
        a(f"v_xor_b32 v{t1}, s{sW}, v{self.vG}")
        a(f"v_lshl_add_u32 v{t0}, v{t1}, 4, v{t0}")
        a(f"v_lshrrev_b32 v{t1}, 1, v{self.vN}")
        a(f"v_lshl_add_u32 v{t0}, v{t1}, 1, v{t0}")
        a(f"v_add_u32 v{t0}, {lds}, v{t0}")
        for ty in range(2):
            for kt in range(2):
                for i in range(4):
                    a(f"ds_read_u16_d16_hi v{W+8*ty+4*kt+i}, v{t0} offset:{ty*2048 + kt*1024 + i*64}")
        lab = a.newlabel("A2fx")
        a(f"s_or_b32 s{self.sA}, s{self.sJ}, s{sW}")
        a(f"s_cmp_lg_u32 s{self.sA}, 0")
        a.fence()
        a(f"s_cbranch_scc1 {lab}")
        P = self.XF
        a(f"v_and_b32 v{t0}, 31, v{self.vL}")
        a(f"v_lshlrev_b32 v{t0}, 6, v{t0}")
        a(f"v_add_u32 v{t0}, {ska}, v{t0}")
        a(f"v_sub_u32 v{t1}, 2048, v{t0}")
        a(f"v_and_b32 v{t1}, 2047, v{t1}")
        a(f"v_lshrrev_b32 v{t2}, 5, v{self.vL}")
        a(f"v_lshlrev_b32 v{t2}, 9, v{t2}")
        a(f"v_mul_u32_u24 v{t0}, 514, v{t0}")
        a(f"v_add_u32 v{t0}, v{t0}, v{t2}")
        a(f"v_mul_u32_u24 v{t1}, 514, v{t1}")
        a(f"v_add_u32 v{t1}, v{t1}, v{t2}")
        a(f"buffer_load_short_d16_hi v{P}, v{t0}, s[4:7], 0 offen")
        a(f"buffer_load_short_d16_hi v{P+1}, v{t1}, s[4:7], 0 offen")
        a(f"buffer_load_short_d16_hi v{P+2}, v{t0}, s[8:11], 0 offen")
        a(f"buffer_load_short_d16_hi v{P+3}, v{t1}, s[8:11], 0 offen")
        a("s_waitcnt vmcnt(0)")
        a(f"v_fma_f32 v{P}, v{P+1}, {seta}, v{P}")
        a(f"v_fma_f32 v{P+2}, -v{P+3}, {seta}, v{P+2}")
        a(f"v_lshlrev_b32 v{t0}, 2, v{self.vL}")
        a(f"v_add_u32 v{t0}, {self.LF}, v{t0}")
        a(f"ds_write_b32 v{t0}, v{P}")
        a(f"ds_write_b32 v{t0}, v{P+2} offset:256")
        a(f"v_lshlrev_b32 v{t0}, 7, v{self.vN}")
        a(f"v_lshl_add_u32 v{t0}, v{self.vG}, 4, v{t0}")
        a(f"v_add_u32 v{t0}, {self.LF}, v{t0}")
        a("s_waitcnt lgkmcnt(0)")
        a("s_mov_b32 exec_lo, 0x00030003")
        a("s_mov_b32 exec_hi, 0x00030003")
        for ty in range(2):
            for kt in range(2):
                r = W + 8*ty + 4*kt
                a(f"ds_read_b128 v[{r}:{r+3}], v{t0} offset:{ty*256 + kt*64}")
        a("s_waitcnt lgkmcnt(0)")
        a("s_mov_b64 exec, -1")
        a.fence()
        a.label(lab)

    def pre_tables(self):
        a = self.a
        self.table()
        self.mmats(self.SET1, f"s{self.sQ}")
        a(f"s_cmp_lg_u32 s{self.sQ}, 0")
        a(f"s_cselect_b32 s{self.sKap}, 1.0, 0")
    def pre_w(self):
        a = self.a
        self.w_read(self.SET1 + 32, self.LW, f"s{self.sQ}", f"s{self.sKap}")
        lab = a.newlabel("A2s2")
        a(f"s_cmp_lg_u32 s{self.sQ}, 0")
        a.fence()
        a(f"s_cbranch_scc1 {lab}")
        a(f"s_mov_b32 s{self.sKA}, 32")
        self.mmats(self.SET2, f"s{self.sKA}")
        self.w_read(self.SET2 + 32, self.LW2, f"s{self.sKA}", "0")
        a.fence()
        a.label(lab)

    def u_dma(self):
        a = self.a; sW = 3
        for c in range(4):
            a(f"s_lshl_b32 s{self.sA}, s{sW}, 2")
            a(f"s_add_u32 s{self.sA}, s{self.sA}, {c}")
            a(f"v_xor_b32 v{self.vDm[c]}, s{self.sA}, v{self.vL}")
            a(f"v_lshlrev_b32 v{self.vDm[c]}, 4, v{self.vDm[c]}")
        a(f"s_lshl_b32 s{self.sA}, s{sW}, 12")
        a(f"s_lshl_b32 s{self.sB}, s{self.sQ}, 15")
        a(f"s_add_u32 s{self.sB}, s{self.sB}, s{self.sA}")
        if WS_U: a(f"s_add_u32 s{self.sB}, s{self.sB}, {WS_U}")
        if self.LU: a(f"s_add_u32 s{self.sA}, s{self.sA}, {self.LU}")
        out = []
        for mt in range(4):
            for c in range(4):
                goff = (mt & 1)*16384 + (mt >> 1)*32*32768 + c*1024
                s = f"s_add_u32 m0, s{self.sA}, {mt*16384 + c*1024}\n"
                s += f"s_add_u32 s{self.sC}, s{self.sB}, {goff}\n"
                s += f"buffer_load_dwordx4 v{self.vDm[c]}, s[12:15], s{self.sC} offen{self.ld_sc} lds"
                out.append(s)
        return out

    def frag_bases(self):
        a = self.a; t0 = self.t0
        for kk in range(4):
            a(f"v_add_u32 v{t0}, {4*kk}, v{self.vG}")
            a(f"v_xor_b32 v{t0}, v{t0}, v{self.vN}")
            a(f"v_lshlrev_b32 v{t0}, 4, v{t0}")
            a(f"v_lshl_add_u32 v{self.vX[kk]}, v{self.vN}, 10, v{t0}")
            if self.LU: a(f"v_add_u32 v{self.vX[kk]}, {self.LU}, v{self.vX[kk]}")
        a(f"v_lshlrev_b32 v{t0}, 4, v{self.vG}")
        a(f"v_lshl_add_u32 v{self.vS}, v{self.vN}, 16, v{t0}")

    def gemm(self, T, acc, reads, nrt=4):
        a = self.a
        for s in reads(0): a(s)
        for ks in range(16):
            st = ks & 1
            a("s_waitcnt lgkmcnt(0)")
            mf = []
            for mt in range(nrt):
                d = acc + 4*mt
                c = "0" if ks == 0 else f"v[{d}:{d+3}]"
                x = self.XF + 16*st + 4*mt
                mf.append(f"v_mfma_f32_16x16x32_bf16 v[{d}:{d+3}], v[{x}:{x+3}], v[{T+4*ks}:{T+4*ks+3}], {c}")
            sec = reads(ks + 1) if ks + 1 < 16 else []
            interleave(a, mf, sec, lead=len(sec))

    def gemm1(self):
        def reads(ks):
            st = ks & 1
            return [f"ds_read_b128 v[{self.XF+16*st+4*mt}:{self.XF+16*st+4*mt+3}], v{self.vX[ks&3]} offset:{mt*16384 + (ks>>2)*256}" for mt in range(4)]
        self.gemm(self.T, self.ACC, reads)

    def middle(self):
        a = self.a
        acc = self.ACC; X = self.XF
        Cf, Sf, Ci, Si = self.SET1, self.SET1 + 8, self.SET1 + 16, self.SET1 + 24
        Wr, Wi = self.SET1 + 32, self.SET1 + 40
        sW = 3
        loop = a.newlabel("A2loop"); notq0 = a.newlabel("A2nq0"); done = a.newlabel("A2done"); tail = a.newlabel("A2tail")
        a(f"s_mov_b32 s{self.sPass}, 0")
        a(f"s_cmp_lg_u32 s{self.sQ}, 0")
        a.fence()
        a(f"s_cbranch_scc1 {loop}")
        for i in range(8):
            a(f"v_mov_b32 v{self.SAVE+i}, v{acc+8+i}")
            a(f"v_mov_b32 v{acc+8+i}, 0")
        a.fence()
        a.label(loop)
        tt = X
        f1p, g2p, nf1p = X + 8, X + 12, X + 16
        for i in range(8):
            a(f"v_mov_b32 v{tt+i}, v{acc+8+i}")
        for i in range(8):
            a(f"v_fmac_f32_dpp v{tt+i}, v{acc+i}, v{self.vMu} quad_perm:[1,0,3,2] row_mask:0xf bank_mask:0xf")
        for i in range(8):
            a(f"v_fmac_f32_dpp v{acc+i}, v{acc+8+i}, v{self.vNMu} quad_perm:[1,0,3,2] row_mask:0xf bank_mask:0xf")
        for h in range(4):
            a(f"v_cvt_pk_bf16_f32 v{g2p+h}, -v{tt+2*h}, -v{tt+2*h+1}")
            a(f"v_cvt_pk_bf16_f32 v{f1p+h}, v{acc+2*h}, v{acc+2*h+1}")
            a(f"v_cvt_pk_bf16_f32 v{nf1p+h}, -v{acc+2*h}, -v{acc+2*h+1}")
        Xr, Xi = acc, acc + 8
        for kt in range(2):
            a(f"v_mfma_f32_16x16x32_bf16 v[{Xr+4*kt}:{Xr+4*kt+3}], v[{Cf+4*kt}:{Cf+4*kt+3}], v[{f1p}:{f1p+3}], 0")
            a(f"v_mfma_f32_16x16x32_bf16 v[{Xi+4*kt}:{Xi+4*kt+3}], v[{Cf+4*kt}:{Cf+4*kt+3}], v[{g2p}:{g2p+3}], 0")
        for kt in range(2):
            a(f"v_mfma_f32_16x16x32_bf16 v[{Xr+4*kt}:{Xr+4*kt+3}], v[{Sf+4*kt}:{Sf+4*kt+3}], v[{g2p}:{g2p+3}], v[{Xr+4*kt}:{Xr+4*kt+3}]")
            a(f"v_mfma_f32_16x16x32_bf16 v[{Xi+4*kt}:{Xi+4*kt+3}], v[{Sf+4*kt}:{Sf+4*kt+3}], v[{nf1p}:{nf1p+3}], v[{Xi+4*kt}:{Xi+4*kt+3}]")
        Yr, Yi = X, X + 8
        for h in range(4):
            o = 2*h
            a(f"v_pk_mul_f32 v[{Yr+o}:{Yr+o+1}], v[{Xr+o}:{Xr+o+1}], v[{Wr+o}:{Wr+o+1}]")
            a(f"v_pk_mul_f32 v[{Yi+o}:{Yi+o+1}], v[{Xr+o}:{Xr+o+1}], v[{Wi+o}:{Wi+o+1}]")
        for h in range(4):
            o = 2*h
            a(f"v_pk_fma_f32 v[{Yr+o}:{Yr+o+1}], v[{Xi+o}:{Xi+o+1}], v[{Wi+o}:{Wi+o+1}], v[{Yr+o}:{Yr+o+1}] neg_lo:[1,0,0] neg_hi:[1,0,0]")
            a(f"v_pk_fma_f32 v[{Yi+o}:{Yi+o+1}], v[{Xi+o}:{Xi+o+1}], v[{Wr+o}:{Wr+o+1}], v[{Yi+o}:{Yi+o+1}]")
        Yrp, Yip, nYip = X + 16, X + 20, X + 24
        for h in range(4):
            a(f"v_cvt_pk_bf16_f32 v{Yrp+h}, v{Yr+2*h}, v{Yr+2*h+1}")
            a(f"v_cvt_pk_bf16_f32 v{Yip+h}, v{Yi+2*h}, v{Yi+2*h+1}")
            a(f"v_cvt_pk_bf16_f32 v{nYip+h}, -v{Yi+2*h}, -v{Yi+2*h+1}")
        Zr, Zi = acc, acc + 8
        for nt in range(2):
            a(f"v_mfma_f32_16x16x32_bf16 v[{Zr+4*nt}:{Zr+4*nt+3}], v[{Yrp}:{Yrp+3}], v[{Ci+4*nt}:{Ci+4*nt+3}], 0")
            a(f"v_mfma_f32_16x16x32_bf16 v[{Zi+4*nt}:{Zi+4*nt+3}], v[{Yrp}:{Yrp+3}], v[{Si+4*nt}:{Si+4*nt+3}], 0")
        for nt in range(2):
            a(f"v_mfma_f32_16x16x32_bf16 v[{Zr+4*nt}:{Zr+4*nt+3}], v[{nYip}:{nYip+3}], v[{Si+4*nt}:{Si+4*nt+3}], v[{Zr+4*nt}:{Zr+4*nt+3}]")
            a(f"v_mfma_f32_16x16x32_bf16 v[{Zi+4*nt}:{Zi+4*nt+3}], v[{Yip}:{Yip+3}], v[{Ci+4*nt}:{Ci+4*nt+3}], v[{Zi+4*nt}:{Zi+4*nt+3}]")
        E, O = X, X + 8
        kap = f"s{self.sKap}"
        for nt in range(2):
            for jj in range(2):
                ar, ur = Zr + 4*nt + 2*jj, Zr + 4*nt + 2*jj + 1
                ai, ui = Zi + 4*nt + 2*jj, Zi + 4*nt + 2*jj + 1
                e = E + 4*nt + 2*jj; o = O + 4*nt + 2*jj
                a(f"v_fma_f32 v{e}, {kap}, v{ur}, v{ar}")
                a(f"v_fma_f32 v{e+1}, {kap}, v{ui}, -v{ai}")
                a(f"v_fma_f32 v{o}, {kap}, v{ui}, v{ai}")
                a(f"v_fma_f32 v{o+1}, -{kap}, v{ur}, v{ar}")
        lab = a.newlabel("A2j0")
        a(f"s_or_b32 s{self.sA}, s{self.sJ}, s{sW}")
        a(f"s_cmp_lg_u32 s{self.sA}, 0")
        a.fence()
        a(f"s_cbranch_scc1 {lab}")
        a("s_mov_b64 exec, 0xffff")
        for nt in range(2):
            a(f"v_mul_f32 v{E+4*nt}, 0.5, v{Zr+4*nt}")
            a(f"v_mul_f32 v{E+4*nt+1}, 0.5, v{Zr+4*nt+1}")
            a(f"v_mul_f32 v{O+4*nt}, 0.5, v{Zi+4*nt}")
            a(f"v_mul_f32 v{O+4*nt+1}, 0.5, v{Zi+4*nt+1}")
        a("s_mov_b64 exec, -1")
        a.fence()
        a.label(lab)
        P = X + 16
        for nt in range(2):
            for jj in range(2):
                a(f"v_cvt_pk_bf16_f32 v{P+4*nt+jj}, v{E+4*nt+2*jj}, v{E+4*nt+2*jj+1}")
                a(f"v_cvt_pk_bf16_f32 v{P+4*nt+2+jj}, v{O+4*nt+2*jj}, v{O+4*nt+2*jj+1}")
        a(f"s_cmp_lg_u32 s{self.sQ}, 0")
        a.fence()
        a(f"s_cbranch_scc1 {tail}")
        a(f"s_cmp_lg_u32 s{self.sPass}, 0")
        a(f"s_cbranch_scc1 {done}")
        a(f"s_mov_b32 s{self.sPass}, 1")
        SE = self.SAVE + 8
        for nt in range(2):
            for jj in range(2):
                a(f"v_mov_b32 v{SE+2*nt+jj}, v{P+4*nt+jj}")
        for i in range(8):
            a(f"v_mov_b32 v{acc+i}, v{self.SAVE+i}")
            a(f"v_mov_b32 v{acc+8+i}, 0")
        for i in range(48):
            a(f"v_mov_b32 v{self.SET1+i}, v{self.SET2+i}")
        a.fence()
        a(f"s_branch {loop}")
        a.label(done)
        for nt in range(2):
            for jj in range(2):
                a(f"v_mov_b32 v{P+4*nt+2+jj}, v{P+4*nt+jj}")
                a(f"v_mov_b32 v{P+4*nt+jj}, v{SE+2*nt+jj}")
        a.fence()
        a.label(tail)
        for nt in range(2):
            a(f"v_permlane16_swap_b32 v{P+4*nt}, v{P+4*nt+2}")
            a(f"v_permlane16_swap_b32 v{P+4*nt+1}, v{P+4*nt+3}")
        a(f"s_lshl_b32 s{self.sA}, s{self.sQ}, 11")
        a(f"s_lshl_b32 s{self.sB}, s{self.sJ}, 8")
        a(f"s_add_u32 s{self.sA}, s{self.sA}, s{self.sB}")
        a(f"s_lshl_b32 s{self.sB}, s{sW}, 6")
        a(f"s_add_u32 s{self.sA}, s{self.sA}, s{self.sB}")
        a(f"s_add_u32 s{self.sA}, s{self.sA}, {WS_ZO}")
        for nt in range(2):
            if nt: a(f"s_add_u32 s{self.sA}, s{self.sA}, {16*65536}")
            a(f"buffer_store_dwordx4 v[{P+4*nt}:{P+4*nt+3}], v{self.vS}, s[12:15], s{self.sA} offen{self.sc}")

def kernel_A2(name, prof=False, **kw):
    a = HAsm(); a.prof = prof
    a("s_cmp_ge_u32 s2, 256")
    a(f"s_cbranch_scc1 L_{name}_end")
    stamp(a, 0, real=True); stamp(a, 1)
    load_srd(a, 4, "wr"); load_srd(a, 8, "wi"); load_srd(a, 12, "ws")
    wave_id(a, 3, 1)
    a("s_waitcnt lgkmcnt(0)")
    fin_srd(a, 4, "wr"); fin_srd(a, 8, "wi"); fin_srd(a, 12, "ws", WS_SIZE)
    A = A2(a, **kw)
    A.decode()
    A.w_dma()
    A.pre_tables()
    stamp(a, 8)
    a("s_waitcnt vmcnt(0)")
    A.barrier(a)
    A.pre_w()
    stamp(a, 9)
    for s in A.u_dma(): a(s)
    A.frag_bases()
    stamp(a, 2)
    a("s_waitcnt vmcnt(0)")
    A.barrier(a)
    stamp(a, 3)
    A.gemm1()
    stamp(a, 4)
    A.middle()
    stamp(a, 5)
    if prof: a("s_waitcnt vmcnt(0)")
    stamp(a, 6); stamp(a, 7, real=True)
    dump_stamps(a, 10)
    a.fence()
    a.label(f"L_{name}_end")
    a("s_endpgm")
    return (name, a.text(), A2.NV, 0, 100), 65536 + 16384 + 512

if __name__ == "__main__":
    k, lds = kernel_A2(KNAME, prof=True)
    open(f"a2.s", "w").write(build_file([k], [(KNAME, 256, 256, lds)]))
    print("lds", lds, "vgprs", k[2], "lines", k[1].count("\n"))
```

```python
from common import *
from b2 import decode_pt
from a1 import f2u
from a2 import A2
LOG2E = 1.4426950408889634

class A3(A2):
    sP, sT = 20, 21
    F3 = 16
    G = 64
    GT = 48
    BT = 176
    def decode(self):
        decode_pt(self.a, self.sP, self.sT, self.sA)
        lane_decomp(self.a, self.vL, self.vG, self.vN)
    def gtable(self):
        a = self.a; t0, t1, t2, t3 = self.t0, self.t1, self.t2, self.t3
        sW = 3
        a(f"s_lshl_b32 s{self.sA}, s{self.sT}, 6")
        a(f"s_lshl_b32 s{self.sB}, s{sW}, 4")
        a(f"s_add_u32 s{self.sA}, s{self.sA}, s{self.sB}")
        a(f"v_add_u32 v{t0}, s{self.sA}, v{self.vN}")
        a(f"v_cvt_f32_u32 v{t0}, v{t0}")
        a(f"v_mul_f32 v{t0}, 0x{f2u(1/512):08x}, v{t0}")
        a(f"v_lshlrev_b32 v{t1}, 2, v{self.vG}")
        a(f"v_cvt_f32_u32 v{t1}, v{t1}")
        a(f"v_mul_f32 v{t1}, v{t1}, v{t0}")
        a(f"v_add_f32 v{t2}, 0x{f2u(-0.25):08x}, v{t1}")
        a(f"v_and_b32 v{t3}, 1, v{self.vN}")
        a(f"v_cvt_f32_u32 v{t3}, v{t3}")
        a(f"v_fma_f32 v{t3}, v{t3}, -2.0, 1.0")
        self.cheb_table(self.G, t0, lambda e: t2 if (e & 1) else t1, 16.0, lambda e: float(e >> 1))
    def pack_ks(self, T, ks, cur):
        a = self.a
        if ks == 0:
            tmp = self.XF + 17
            a(f"v_cmp_eq_u32 vcc, 0, v{self.vG}")
            a(f"v_cndmask_b32 v{tmp}, v{cur+1}, v{self.t3}, vcc")
            a(f"v_cvt_pk_bf16_f32 v{T}, v{cur}, v{tmp}")
            for h in range(1, 4):
                a(f"v_cvt_pk_bf16_f32 v{T+h}, v{cur+2*h}, v{cur+2*h+1}")
        else:
            A2.pack_ks(self, T, ks, cur)
    def f3(self):
        a = self.a; t0, t1, t2, t3 = self.t0, self.t1, self.t2, self.t3
        tc = self.XF; ts = self.XF + 8; ar = self.XF + 16
        ce = [16*(e >> 2) + (e & 3) for e in range(8)]
        a(f"v_lshlrev_b32 v{t3}, 2, v{self.vG}")
        a(f"v_cvt_f32_u32 v{t3}, v{t3}")
        a(f"v_and_b32 v{t2}, 1, v{self.vN}")
        a(f"v_cvt_f32_u32 v{t2}, v{t2}")
        a(f"v_fma_f32 v{t2}, v{t2}, 2.0, -1.0")
        a(f"v_cmp_eq_u32 vcc, 0, v{self.vG}")
        for nt in range(4):
            a(f"v_add_u32 v{t0}, {16*nt}, v{self.vN}")
            a(f"v_cvt_f32_u32 v{t0}, v{t0}")
            a(f"v_mul_f32 v{t0}, 0x{f2u(1/64):08x}, v{t0}")
            a(f"v_mul_f32 v{t1}, v{t0}, v{t3}")
            for e in range(8):
                if ce[e] == 0: src = t1
                else:
                    a(f"v_fmamk_f32 v{ar+e}, v{t0}, 0x{f2u(float(ce[e])):08x}, v{t1}"); src = ar + e
                a(f"v_cos_f32 v{tc+e}, v{src}")
                a(f"v_sin_f32 v{ts+e}, v{src}")
            a(f"v_cndmask_b32 v{ts}, v{ts}, v{t2}, vcc")
            for h in range(4):
                a(f"v_cvt_pk_bf16_f32 v{self.F3+8*nt+h}, v{tc+2*h}, v{tc+2*h+1}")
                a(f"v_cvt_pk_bf16_f32 v{self.F3+8*nt+4+h}, -v{ts+2*h}, -v{ts+2*h+1}")
    def z_dma(self):
        a = self.a; sW = 3
        for c in range(4):
            a(f"s_lshl_b32 s{self.sA}, s{sW}, 2")
            a(f"s_add_u32 s{self.sA}, s{self.sA}, {c}")
            a(f"v_xor_b32 v{self.vDm[c]}, s{self.sA}, v{self.vL}")
            a(f"v_lshlrev_b32 v{self.vDm[c]}, 4, v{self.vDm[c]}")
        a(f"s_lshl_b32 s{self.sA}, s{sW}, 13")
        a(f"s_lshl_b32 s{self.sB}, s{self.sP}, 16")
        a(f"s_add_u32 s{self.sB}, s{self.sB}, s{self.sA}")
        a(f"s_add_u32 s{self.sB}, s{self.sB}, {WS_ZO}")
        if self.LU: a(f"s_add_u32 s{self.sA}, s{self.sA}, {self.LU}")
        out = []
        for half in range(2):
            for b in range(2):
                for c in range(4):
                    off = b*32768 + c*2048 + half*1024
                    s = f"s_add_u32 m0, s{self.sA}, {off}\n"
                    s += f"s_add_u32 s{self.sC}, s{self.sB}, {off}\n"
                    s += f"buffer_load_dwordx4 v{self.vDm[c]}, s[12:15], s{self.sC} offen{self.ld_sc} lds"
                    out.append(s)
        return out
    def frag_bases(self):
        a = self.a; t0, t1 = self.t0, self.t1
        for EO in range(2):
            for k1 in range(2):
                a(f"v_lshlrev_b32 v{t0}, 1, v{self.vG}")
                a(f"v_or_b32 v{t0}, {8*k1 + EO}, v{t0}")
                a(f"v_xor_b32 v{t0}, v{t0}, v{self.vN}")
                a(f"v_lshlrev_b32 v{t0}, 4, v{t0}")
                a(f"v_lshl_add_u32 v{self.vX[2*EO+k1]}, v{self.vN}, 11, v{t0}")
                if self.LU: a(f"v_add_u32 v{self.vX[2*EO+k1]}, {self.LU}, v{self.vX[2*EO+k1]}")
        a(f"v_and_b32 v{t0}, 1, v{self.vG}")
        a(f"v_lshl_add_u32 v{t0}, v{t0}, 4, v{self.vN}")
        a(f"v_lshlrev_b32 v{t0}, 15, v{t0}")
        a(f"v_lshrrev_b32 v{t1}, 1, v{self.vG}")
        a(f"v_lshl_add_u32 v{self.vS}, v{t1}, 4, v{t0}")
    def gate_load(self):
        a = self.a; t0 = self.t0
        a(f"v_lshlrev_b32 v{t0}, 8, v{self.vG}")
        a(f"v_lshl_add_u32 v{t0}, v{self.vN}, 4, v{t0}")
        a(f"s_lshl_b32 s{self.sA}, s{self.sP}, 11")
        a(f"s_add_u32 s{self.sA}, s{self.sA}, {WS_GL}")
        for h in range(2):
            a(f"buffer_load_dwordx4 v[{self.GT+4*h}:{self.GT+4*h+3}], v{t0}, s[12:15], s{self.sA} offen offset:{h*1024}{self.ld_sc}")
    def gate_calc(self):
        a = self.a; G = self.GT
        for i in range(4): a(f"v_add_f32 v{G+i}, v{G+i}, v{G+4+i}")
        for swap in ("v_permlane32_swap_b32", "v_permlane16_swap_b32"):
            for i in range(4): a(f"v_mov_b32 v{G+4+i}, v{G+i}")
            for i in range(4): a(f"{swap} v{G+i}, v{G+4+i}")
            for i in range(4): a(f"v_add_f32 v{G+i}, v{G+i}, v{G+4+i}")
        for i in range(4): a(f"v_mul_f32 v{G+i}, 0x{f2u(-LOG2E):08x}, v{G+i}")
        for i in range(4): a(f"v_exp_f32 v{G+i}, v{G+i}")
        for i in range(4): a(f"v_add_f32 v{G+i}, 1.0, v{G+i}")
        for i in range(4): a(f"v_rcp_f32 v{G+i}, v{G+i}")
    def gemm3(self):
        def reads(ks):
            st = ks & 1
            return [f"ds_read_b128 v[{self.XF+16*st+4*rt}:{self.XF+16*st+4*rt+3}], v{self.vX[2*(rt>>1)+(ks&1)]} offset:{(rt&1)*32768 + (ks>>3)*1024 + ((ks&7)>>1)*256}" for rt in range(4)]
        self.gemm(self.G, self.ACC, reads)
    def second(self):
        a = self.a; acc = self.ACC; P = self.XF; D2 = self.XF + 16
        for rt in range(4):
            for h in range(2):
                a(f"v_cvt_pk_bf16_f32 v{P+2*rt+h}, v{acc+4*rt+2*h}, v{acc+4*rt+2*h+1}")
        for ks2 in range(2):
            for nt in range(4):
                d = D2 + 4*nt
                c = "0" if ks2 == 0 else f"v[{d}:{d+3}]"
                f = self.F3 + 8*nt + 4*ks2
                a(f"v_mfma_f32_16x16x32_bf16 v[{d}:{d+3}], v[{P+4*ks2}:{P+4*ks2+3}], v[{f}:{f+3}], {c}")
    def b_load_ws(self):
        a = self.a
        a("s_lshl_b32 s22, s2, 2\ns_add_u32 s22, s22, s3\ns_lshl_b32 s22, s22, 12")
        a(f"s_add_u32 s22, s22, {WS_BT}")
        a(f"v_lshlrev_b32 v{self.t0}, 4, v0")
        for nt in range(4):
            a(f"buffer_load_dwordx4 v[{self.BT+4*nt}:{self.BT+4*nt+3}], v{self.t0}, s[12:15], s22 offen offset:{nt*1024}")
    def mix_store(self):
        a = self.a; D2 = self.XF + 16; B = self.BT; G = self.GT; sW = 3
        SC = 2.0/(2048*512)
        a(f"s_mov_b32 s{self.sC}, 0x{f2u(SC):08x}")
        for nt in range(4):
            for i in range(4):
                a(f"v_fma_f32 v{D2+4*nt+i}, v{D2+4*nt+i}, s{self.sC}, -v{B+4*nt+i}")
            for i in range(4):
                a(f"v_fma_f32 v{D2+4*nt+i}, v{D2+4*nt+i}, v{G+nt}, v{B+4*nt+i}")
        P = self.XF
        for nt in range(4):
            for h in range(2):
                r = P + 4*(nt >> 1) + 2*(nt & 1) + h
                a(f"v_cvt_pk_bf16_f32 v{r}, v{D2+4*nt+2*h}, v{D2+4*nt+2*h+1}")
        a(f"s_lshl_b32 s{self.sA}, s{self.sP}, 10")
        a(f"s_lshl_b32 s{self.sB}, s{self.sT}, 7")
        a(f"s_add_u32 s{self.sA}, s{self.sA}, s{self.sB}")
        a(f"s_lshl_b32 s{self.sB}, s{sW}, 5")
        a(f"s_add_u32 s{self.sA}, s{self.sA}, s{self.sB}")
        for pair in range(2):
            b = P + 4*pair
            a(f"v_permlane16_swap_b32 v{b}, v{b+2}")
            a(f"v_permlane16_swap_b32 v{b+1}, v{b+3}")
            if pair: a(f"s_add_u32 s{self.sA}, s{self.sA}, {32*32768}")
            a(f"buffer_store_dwordx4 v[{b}:{b+3}], v{self.vS}, {self.OUT}, s{self.sA} offen{MOD.out}")

def kernel_A3(name, prof=False, **kw):
    a = HAsm(); a.prof = prof
    a("s_cmp_ge_u32 s2, 256")
    a(f"s_cbranch_scc1 L_{name}_end")
    stamp(a, 0, real=True); stamp(a, 1)
    load_srd(a, 4, "out"); load_srd(a, 12, "ws")
    wave_id(a, 3, 1)
    a("s_waitcnt lgkmcnt(0)")
    fin_srd(a, 4, "out"); fin_srd(a, 12, "ws", WS_SIZE)
    A = A3(a, **kw)
    A.decode()
    A.gtable(); A.f3(); A.frag_bases()
    stamp(a, 8)
    for s in A.z_dma(): a(s)
    A.gate_load(); A.b_load_ws()
    stamp(a, 2)
    a("s_waitcnt vmcnt(0)")
    A.barrier(a)
    stamp(a, 3)
    A.gate_calc()
    A.gemm3()
    stamp(a, 4)
    A.second()
    A.mix_store()
    stamp(a, 5)
    if prof: a("s_waitcnt vmcnt(0)")
    stamp(a, 6); stamp(a, 7, real=True)
    dump_stamps(a, 10)
    a.fence()
    a.label(f"L_{name}_end")
    a("s_endpgm")
    return (name, a.text(), A2.NV, 0, 100), 65536

if __name__ == "__main__":
    k, lds = kernel_A3(KNAME, prof=True)
    open(f"a3.s", "w").write(build_file([k], [(KNAME, 256, 256, lds)]))
    print("lds", lds, "vgprs", k[2], "lines", k[1].count("\n"))
```

```python
KNAME = "gated_mix__spectral_gfnet__dense_activation_gelu__prompt_kernel"

class Asm:
    def __init__(self):
        self.lines = []
        Asm.count = getattr(Asm, "count", 0) + 1
        self.uid = Asm.count * 1000
    def __call__(self, s=""):
        for l in s.split("\n"):
            self.lines.append("    " + l.strip() if l.strip() and not l.strip().endswith(":") else l.strip())
    def label(self, name):
        self.lines.append(name + ":")
    def newlabel(self, base="L"):
        self.uid += 1
        return f"{base}_{self.uid}"
    def comment(self, s):
        self.lines.append("    ; " + s)
    def text(self):
        return "\n".join(self.lines) + "\n"

def vr(base, n=1):
    return f"v{base}" if n == 1 else f"v[{base}:{base+n-1}]"
def ar(base, n=1):
    return f"a{base}" if n == 1 else f"a[{base}:{base+n-1}]"
def sr(base, n=1):
    return f"s{base}" if n == 1 else f"s[{base}:{base+n-1}]"

HEADER_COMMENT = """; Kernarg layout for this problem (96 bytes, ptrs only, base s[0:1]):
"""

def kernel_desc(name, vgprs, agprs=0, sgprs=102):
    acc = (vgprs + 3) // 4 * 4
    if acc == 0:
        acc = 4
    nfv = acc + agprs if agprs else vgprs
    return f""".amdhsa_kernel {name}
  .amdhsa_next_free_vgpr {nfv}
  .amdhsa_next_free_sgpr {sgprs}
  .amdhsa_accum_offset {acc}
  .amdhsa_group_segment_fixed_size 0
  .amdhsa_kernarg_size 96
  .amdhsa_user_sgpr_count 2
  .amdhsa_user_sgpr_kernarg_segment_ptr 1
  .amdhsa_system_sgpr_workgroup_id_x 1
.end_amdhsa_kernel
"""

def build_file(kernels, launches):
    out = HEADER_COMMENT
    if len(launches) == 1 and launches[0][0] == KNAME:
        n, g, b, l = launches[0]
        out += f"; @launch grid=({g},1,1) block=({b},1,1) lds={l}\n"
    else:
        for n, g, b, l in launches:
            out += f"; @launch kernel={n} grid=({g},1,1) block=({b},1,1) lds={l}\n"
    out += '.amdgcn_target "amdgcn-amd-amdhsa--gfx950"\n.text\n'
    for name, text, v, a, s in kernels:
        out += f".globl {name}\n.p2align 8\n.type {name},@function\n{name}:\n{text}"
    out += '.section .rodata,"a"\n'
    for name, text, v, a, s in kernels:
        out += ".p2align 6\n" + kernel_desc(name, v, a, s)
    return out

KA = dict(xA=0, wr=8, wi=16, xB=24, w1=32, b1=40, w2=48, b2=56, gw=64, out=72, dbg=80, ws=88)
SIZES = dict(xA=2097152, wr=2048*514, wi=2048*514, xB=2097152, w1=512*2752, b1=2752, w2=1376*1024, b2=1024, gw=1024, out=2097152, dbg=256, ws=268435456)

def load_srd(a, sbase, name, size=None):
    a(f"s_load_dwordx2 s[{sbase}:{sbase+1}], s[0:1], {KA[name]}")
def fin_srd(a, sbase, name, size=None):
    a(f"s_and_b32 s{sbase+1}, s{sbase+1}, 0xffff")
    a(f"s_mov_b32 s{sbase+2}, {size if size is not None else SIZES[name]}")
    a(f"s_mov_b32 s{sbase+3}, 0x20000")
```

```python
from common import *

GELU_C1 = -2.302208198144325
GELU_C2 = GELU_C1 * 0.044715
import struct
def f2u(x): return struct.unpack('<I', struct.pack('<f', x))[0]

def gen_B1(a, exp='', XB=0, WR=65536, R=4, ringstride=None, sc=" sc1", barrier=lambda a: a("s_barrier"), vb=0):
    ringstride = ringstride or R * 3072
    V = lambda r: r + vb
    vL = 0
    vW = [V(1), V(2), V(3)]; vT = V(4); vX = [V(5), V(6), V(7), V(8)]
    t0, t1, t2, t3, t4, t5 = V(9), V(10), V(11), V(12), V(13), V(14)
    vG, vN = V(15), V(16)
    bias = V(20)
    xf = [V(32), V(48)]
    wf = [V(64), V(76)]
    acc = V(88)
    sRT, sCT, sT0, sVal, sA, sB, sC = 20, 21, 22, 23, 24, 25, 26
    sW = 3
    a(f"s_and_b32 s{sA}, s2, 7")
    a(f"s_lshr_b32 s{sB}, s2, 3")
    a(f"s_lshr_b32 s{sRT}, s{sA}, 1")
    a(f"s_lshl_b32 s{sRT}, s{sRT}, 3")
    a(f"s_and_b32 s{sC}, s{sB}, 7")
    a(f"s_add_u32 s{sRT}, s{sRT}, s{sC}")
    a(f"s_and_b32 s{sCT}, s{sA}, 1")
    a(f"s_lshl_b32 s{sCT}, s{sCT}, 2")
    a(f"s_lshr_b32 s{sC}, s{sB}, 3")
    a(f"s_add_u32 s{sCT}, s{sCT}, s{sC}")
    a(f"s_mul_i32 s{sT0}, s{sCT}, 11")
    a(f"s_max_u32 s{sC}, s{sCT}, 6")
    a(f"s_sub_u32 s{sC}, s{sC}, 6")
    a(f"s_sub_u32 s{sT0}, s{sT0}, s{sC}")
    a(f"s_cmp_lt_u32 s{sCT}, 6")
    a(f"s_cselect_b32 s{sVal}, 11, 10")
    a(f"s_mul_i32 s{sC}, s{sW}, 3")
    a(f"s_add_u32 s{sT0}, s{sT0}, s{sC}")
    a(f"s_sub_u32 s{sVal}, s{sVal}, s{sC}")
    a(f"s_min_u32 s{sVal}, s{sVal}, 3")
    lane_decomp(a, vL, vG, vN)
    a(f"v_lshlrev_b32 v{t0}, 3, v{vG}")
    a(f"s_lshl_b32 s{sA}, s{sT0}, 5")
    for j in range(3):
        a(f"buffer_load_dwordx2 v[{xf[1]+2*j}:{xf[1]+2*j+1}], v{t0}, s[16:19], s{sA} offen offset:{32*j}")
    for c in range(4):
        a(f"s_lshl_b32 s{sA}, s{sW}, 2")
        a(f"s_add_u32 s{sA}, s{sA}, {c}")
        a(f"v_xor_b32 v{t1+c}, s{sA}, v{vL}")
        a(f"v_lshlrev_b32 v{t1+c}, 4, v{t1+c}")
    a(f"s_lshl_b32 s{sA}, s{sW}, 2")
    a(f"s_lshl_b32 s{sB}, s{sA}, 15")
    a(f"s_lshl_b32 s{sC}, s{sRT}, 10")
    a(f"s_add_u32 s{sB}, s{sB}, s{sC}")
    a(f"s_lshl_b32 s{sA}, s{sA}, 10")
    a(f"s_add_u32 s{sA}, s{sA}, {XB}")
    for mt in range(4):
        for c in range(4):
            a(f"s_add_u32 m0, s{sA}, {mt*16384 + c*1024}")
            a(f"s_add_u32 s{sC}, s{sB}, {(mt*16 + c)*32768}")
            a(f"buffer_load_dwordx4 v{t1+c}, s[4:7], s{sC} offen lds")
    for i in range(3):
        a(f"v_add_u32 v{t0}, {64*i}, v{vL}")
        a(f"v_mul_u32_u24 v{t5}, 43691, v{t0}")
        a(f"v_lshrrev_b32 v{t5}, 18, v{t5}")
        a(f"v_mul_u32_u24 v{vW[i]}, 6, v{t5}")
        a(f"v_sub_u32 v{t0}, v{t0}, v{vW[i]}")
        a(f"v_and_b32 v{vW[i]}, 0x13, v{t5}")
        a(f"v_and_b32 v{vT}, 4, v{t5}")
        a(f"v_lshl_or_b32 v{vW[i]}, v{vT}, 1, v{vW[i]}")
        a(f"v_and_b32 v{vT}, 8, v{t5}")
        a(f"v_lshrrev_b32 v{vT}, 1, v{vT}")
        a(f"v_or_b32 v{vW[i]}, v{vW[i]}, v{vT}")
        a(f"v_mul_u32_u24 v{vW[i]}, 2752, v{vW[i]}")
        a(f"v_lshl_add_u32 v{vW[i]}, v{t0}, 4, v{vW[i]}")
        a(f"v_lshrrev_b32 v{t0}, 1, v{t0}")
        a(f"v_cmp_le_u32 vcc, s{sVal}, v{t0}")
        a(f"v_mov_b32 v{t5}, 0x7ff00000")
        a(f"v_cndmask_b32 v{vW[i]}, v{vW[i]}, v{t5}, vcc")
    sRing, sWO = 27, 28
    a(f"s_mul_i32 s{sRing}, s{sW}, {ringstride}")
    a(f"s_add_u32 s{sRing}, s{sRing}, {WR}")
    a(f"s_lshl_b32 s{sWO}, s{sT0}, 5")
    def wdma(ks):
        out = []
        slot = ks % R
        for i in range(3):
            s = ""
            if i == 0:
                s += f"s_add_u32 s{sC}, s{sWO}, {ks*32*2752}\n"
            s += f"s_add_u32 m0, s{sRing}, {slot*3072 + i*1024}\n"
            s += f"buffer_load_dwordx4 v{vW[i]}, s[8:11], s{sC} offen lds"
            out.append(s)
        return out
    for ks in range(R):
        for s in wdma(ks): a(s)
    a(f"v_lshrrev_b32 v{t0}, 2, v{vN}")
    a(f"v_and_b32 v{t5}, 1, v{vG}")
    a(f"v_lshl_add_u32 v{t0}, v{t5}, 2, v{t0}")
    a(f"v_lshrrev_b32 v{t5}, 1, v{vG}")
    a(f"v_lshl_add_u32 v{t0}, v{t5}, 4, v{t0}")
    a(f"v_mul_u32_u24 v{t0}, 96, v{t0}")
    a(f"v_and_b32 v{t5}, 3, v{vN}")
    a(f"v_lshl_add_u32 v{t0}, v{t5}, 3, v{t0}")
    a(f"v_add_u32 v{vT}, s{sRing}, v{t0}")
    for kk in range(4):
        a(f"v_add_u32 v{t0}, {4*kk}, v{vG}")
        a(f"v_xor_b32 v{t0}, v{t0}, v{vN}")
        a(f"v_lshlrev_b32 v{t0}, 4, v{t0}")
        a(f"v_lshl_add_u32 v{vX[kk]}, v{vN}, 10, v{t0}")
        if XB: a(f"v_add_u32 v{vX[kk]}, {XB}, v{vX[kk]}")
    a(f"s_waitcnt vmcnt({16 + 3*R})")
    for j in range(3):
        for h in range(2):
            src = xf[1] + 2*j + h
            a(f"v_lshlrev_b32 v{bias + 4*j + 2*h}, 16, v{src}")
            a(f"v_and_b32 v{bias + 4*j + 2*h + 1}, 0xffff0000, v{src}")
    a(f"s_waitcnt vmcnt({3*R})")
    stamp(a, 2)
    barrier(a)
    stamp(a, 3)
    def reads(ks):
        st = ks & 1
        slot = ks % R
        out = []
        for j in range(3):
            for h in range(2):
                out.append(f"ds_read_b64_tr_b16 v[{wf[st]+4*j+2*h}:{wf[st]+4*j+2*h+1}], v{vT} offset:{slot*3072 + h*768 + j*32}")
        for mt in range(4):
            out.append(f"ds_read_b128 v[{xf[st]+4*mt}:{xf[st]+4*mt+3}], v{vX[ks&3]} offset:{mt*16384 + (ks>>2)*256}")
        return out
    a(f"s_waitcnt vmcnt({3*(R-1)})")
    for s in reads(0): a(s)
    for ks in range(16):
        st = ks & 1
        a("s_waitcnt lgkmcnt(0)")
        mf = []
        for mt in range(4):
            for j in range(3):
                d = acc + 4*(j*4 + mt)
                c = f"v[{bias+4*j}:{bias+4*j+3}]" if ks == 0 else f"v[{d}:{d+3}]"
                mf.append(f"v_mfma_f32_16x16x32_bf16 v[{d}:{d+3}], v[{wf[st]+4*j}:{wf[st]+4*j+3}], v[{xf[st]+4*mt}:{xf[st]+4*mt+3}], {c}")
        sec = []
        outstanding_after = min(16, ks + R + 1) - (ks + 2)
        if ks + R < 16 and 'nodma' not in exp:
            sec += wdma(ks + R)
        if ks + 1 < 16:
            left = min(15, ks + R) - (ks + 1)
            if 'nodma' not in exp: sec.append(f"s_waitcnt vmcnt({3*left})")
            if 'noread' not in exp: sec += reads(ks + 1)
        if 'nomfma' in exp: mf = mf[:1]
        interleave(a, mf, sec)
    stamp(a, 4)
    cst = xf[0]
    a(f"v_mov_b32 v{cst}, 0x{f2u(GELU_C1):08x}")
    a(f"v_mov_b32 v{cst+1}, 0x{f2u(GELU_C2):08x}")
    a(f"v_mov_b32 v{cst+2}, 1.0")
    a(f"v_mov_b32 v{cst+3}, 1.0")
    a(f"v_and_b32 v{t0}, 1, v{vG}")
    a(f"v_lshlrev_b32 v{t0}, 9, v{t0}")
    a(f"v_lshrrev_b32 v{t5}, 1, v{vG}")
    a(f"v_lshl_add_u32 v{t0}, v{t5}, 8, v{t0}")
    a(f"v_lshl_add_u32 v{t0}, v{vN}, 4, v{t0}")
    a(f"s_mul_i32 s{sA}, s{sRT}, {H_P}")
    a(f"s_lshl_b32 s{sB}, s{sT0}, 11")
    a(f"s_add_u32 s{sA}, s{sA}, s{sB}")
    a(f"s_add_u32 s{sA}, s{sA}, {WS_H}")
    tmp = xf[0] + 4
    pk = xf[1]
    for j in range(3):
        lab = None
        if j > 0:
            lab = a.newlabel("B1skip")
            a.fence()
            a(f"s_cmp_le_u32 s{sVal}, {j}")
            a(f"s_cbranch_scc1 {lab}")
        o = pk + 8*(j & 1)
        for mt in range(4):
            d = acc + 4*(j*4 + mt)
            for h in range(2):
                x = d + 2*h; t = tmp + 2*((mt*2 + h) & 3)
                a(f"v_pk_mul_f32 v[{t}:{t+1}], v[{x}:{x+1}], v[{x}:{x+1}]")
                a(f"v_pk_fma_f32 v[{t}:{t+1}], v[{t}:{t+1}], v[{cst}:{cst+1}], v[{cst}:{cst+1}] op_sel:[0,1,0] op_sel_hi:[1,1,0]")
                a(f"v_pk_mul_f32 v[{t}:{t+1}], v[{t}:{t+1}], v[{x}:{x+1}]")
                a(f"v_exp_f32 v{t}, v{t}")
                a(f"v_exp_f32 v{t+1}, v{t+1}")
                a(f"v_pk_add_f32 v[{t}:{t+1}], v[{t}:{t+1}], v[{cst+2}:{cst+3}]")
                a(f"v_rcp_f32 v{t}, v{t}")
                a(f"v_rcp_f32 v{t+1}, v{t+1}")
                a(f"v_pk_mul_f32 v[{t}:{t+1}], v[{t}:{t+1}], v[{x}:{x+1}]")
                r = o + 4*(mt >> 1) + 2*(mt & 1) + h
                a(f"v_cvt_pk_bf16_f32 v{r}, v{t}, v{t+1}")
        for pair in range(2):
            b = o + 4*pair
            a(f"v_permlane16_swap_b32 v{b}, v{b+2}")
            a(f"v_permlane16_swap_b32 v{b+1}, v{b+3}")
            a(f"s_add_u32 s{sB}, s{sA}, {j*2048 + pair*1024}")
            a(f"buffer_store_dwordx4 v[{b}:{b+3}], v{t0}, s[12:15], s{sB} offen{sc}")
        if lab:
            a.fence()
            a.label(lab)
    return V(136)

def kernel_B1(name, R=4, prof=False, exp=''):
    a = HAsm(); a.prof = prof
    stamp(a, 0, real=True); stamp(a, 1)
    a("s_cmp_ge_u32 s2, 256")
    a("s_cbranch_scc1 L_B1_end")
    load_srd(a, 4, "xA"); load_srd(a, 8, "w1"); load_srd(a, 12, "ws"); load_srd(a, 16, "b1")
    wave_id(a, 3, 1)
    a("s_waitcnt lgkmcnt(0)")
    fin_srd(a, 4, "xA"); fin_srd(a, 8, "w1"); fin_srd(a, 12, "ws", WS_SIZE); fin_srd(a, 16, "b1")
    nv = gen_B1(a, exp=exp, R=R)
    stamp(a, 5)
    if prof: a("s_waitcnt vmcnt(0)")
    stamp(a, 6); stamp(a, 7, real=True)
    dump_stamps(a, 8)
    a.fence()
    a.label("L_B1_end")
    a("s_endpgm")
    return (name, a.text(), nv, 0, 100), 65536 + 4*R*3072

if __name__ == "__main__":
    for R, e in ((4, 'nodma'), (4, 'noread'), (4, 'nodma_noread'), (4, 'nomfma'), (4, 'nomfma_noread')):
        k, lds = kernel_B1(KNAME, R=R, prof=True, exp=e)
        open(f"b1_{e}.s", "w").write(build_file([k], [(KNAME, 256, 256, lds)]))
        print("lds", lds, "lines", k[1].count("\n"))
```

```python
from common import *

def decode_pt(a, sP, sT, sA):
    a(f"s_and_b32 s{sP}, s2, 7")
    a(f"s_lshl_b32 s{sP}, s{sP}, 2")
    a(f"s_lshr_b32 s{sA}, s2, 3")
    a(f"s_lshr_b32 s{sT}, s{sA}, 2")
    a(f"s_and_b32 s{sA}, s{sA}, 3")
    a(f"s_add_u32 s{sP}, s{sP}, s{sA}")

def gen_B2(a, exp='', LB=0, R=6, HD=3, ld_sc=" sc1", barrier=lambda a: a("s_barrier")):
    sW = 3
    sP, sT, sA, sB, sC, sH, sWO, sRing, sNK = 20, 21, 22, 23, 24, 25, 26, 27, 28
    vL = 0; vG, vN = 1, 2
    vD = [3, 4]
    vT = [5, 6, 7, 8]
    vH = 9
    t0, t1, t2 = 10, 11, 12
    wf = [16, 32]
    hf = 48
    acc = hf + 16*HD
    decode_pt(a, sP, sT, sA)
    lane_decomp(a, vL, vG, vN)
    a(f"v_lshrrev_b32 v{t0}, 1, v{vG}")
    a(f"v_lshlrev_b32 v{vH}, 11, v{t0}")
    a(f"v_and_b32 v{t0}, 1, v{vG}")
    a(f"v_lshl_add_u32 v{vH}, v{t0}, 8, v{vH}")
    a(f"v_lshl_add_u32 v{vH}, v{vN}, 4, v{vH}")
    a(f"s_mul_i32 s{sH}, s{sP}, {H_P}")
    a(f"s_mul_i32 s{sA}, s{sW}, {11*4096}")
    a(f"s_add_u32 s{sH}, s{sH}, s{sA}")
    a(f"s_add_u32 s{sH}, s{sH}, {WS_H}")
    for par in range(2):
        a(f"v_lshrrev_b32 v{t0}, 3, v{vL}")
        a(f"v_bfe_u32 v{t1}, v{t0}, 1, 1")
        if par: a(f"v_or_b32 v{t1}, 2, v{t1}")
        a(f"v_bfe_u32 v{t2}, v{vL}, 1, 2")
        a(f"v_xor_b32 v{t1}, v{t1}, v{t2}")
        a(f"v_lshlrev_b32 v{t1}, 5, v{t1}")
        a(f"v_and_b32 v{t2}, 1, v{vL}")
        a(f"v_lshl_add_u32 v{t1}, v{t2}, 4, v{t1}")
        a(f"v_lshl_add_u32 v{vD[par]}, v{t0}, 10, v{t1}")
    a(f"s_mul_i32 s{sWO}, s{sW}, {11*32*1024}")
    a(f"s_lshl_b32 s{sA}, s{sT}, 7")
    a(f"s_add_u32 s{sWO}, s{sWO}, s{sA}")
    a(f"s_mul_i32 s{sRing}, s{sW}, {R*4096}")
    if LB: a(f"s_add_u32 s{sRing}, s{sRing}, {LB}")
    def wdma(ks):
        out = []
        slot = ks % R
        for i in range(4):
            s = f"s_add_u32 s{sC}, s{sWO}, {(ks*32 + 8*i)*1024}\n"
            s += f"s_add_u32 m0, s{sRing}, {slot*4096 + i*1024}\n"
            s += f"buffer_load_dwordx4 v{vD[i&1]}, s[8:11], s{sC} offen lds"
            out.append(s)
        return out
    def hload(ks):
        b = hf + 16*(ks % HD)
        out = []
        for nt in range(4):
            s = ""
            if nt == 0: s += f"s_add_u32 s{sB}, s{sH}, {ks*4096}\n"
            s += f"buffer_load_dwordx4 v[{b+4*nt}:{b+4*nt+3}], v{vH}, s[12:15], s{sB} offen offset:{nt*512}{ld_sc}"
            out.append(s)
        return out
    NK = 11
    seq = []
    for ks in range(max(R, HD)):
        if ks < R:
            for s in wdma(ks): a(s); seq.append(('w', ks))
        if ks < HD:
            for s in hload(ks): a(s); seq.append(('h', ks))
    a(f"v_lshrrev_b32 v{t0}, 2, v{vN}")
    a(f"v_lshl_add_u32 v{t1}, v{vG}, 3, v{t0}")
    a(f"v_lshlrev_b32 v{t1}, 7, v{t1}")
    a(f"v_lshrrev_b32 v{t0}, 1, v{t0}")
    a(f"v_and_b32 v{t2}, 1, v{vG}")
    a(f"v_lshl_add_u32 v{t0}, v{t2}, 1, v{t0}")
    a(f"v_lshl_add_u32 v{t1}, v{t0}, 5, v{t1}")
    a(f"v_and_b32 v{t0}, 3, v{vN}")
    a(f"v_lshl_add_u32 v{t1}, v{t0}, 3, v{t1}")
    for dt in range(4):
        a(f"v_xor_b32 v{vT[dt]}, {dt*32}, v{t1}")
        a(f"v_add_u32 v{vT[dt]}, s{sRing}, v{vT[dt]}")
    def reads(ks):
        st = ks & 1; slot = ks % R
        return [f"ds_read_b64_tr_b16 v[{wf[st]+4*dt+2*h}:{wf[st]+4*dt+2*h+1}], v{vT[dt]} offset:{slot*4096 + h*512}" for dt in range(4) for h in range(2)]
    def wait_for(kind, ks):
        idx = max(i for i, e in enumerate(seq) if e == (kind, ks))
        return f"s_waitcnt vmcnt({len(seq) - 1 - idx})"
    stamp(a, 2)
    a(wait_for('w', 0))
    for s in reads(0): a(s)
    for ks in range(NK):
        st = ks & 1
        a(wait_for('h', ks))
        a("s_waitcnt lgkmcnt(0)")
        if ks == NK - 1:
            lab = a.newlabel("B2z")
            a.fence()
            a(f"s_cmp_lg_u32 s{sW}, 3")
            a(f"s_cbranch_scc1 {lab}")
            b = hf + 16*(ks % HD)
            for r in range(16): a(f"v_mov_b32 v{b+r}, 0")
            a.fence()
            a.label(lab)
        mf = []
        b = hf + 16*(ks % HD)
        for dt in range(4):
            for nt in range(4):
                d = acc + 4*(dt*4 + nt)
                c = "0" if ks == 0 else f"v[{d}:{d+3}]"
                mf.append(f"v_mfma_f32_16x16x32_bf16 v[{d}:{d+3}], v[{wf[st]+4*dt}:{wf[st]+4*dt+3}], v[{b+4*nt}:{b+4*nt+3}], {c}")
        sec = []
        if ks + R < NK and 'nodma' not in exp:
            w = wdma(ks + R)
        else:
            w = []
        pre = []
        for s in w:
            pre.append(s); seq.append(('w', ks + R))
        if ks + 1 < NK:
            pre.append(wait_for('w', ks + 1))
            pre += reads(ks + 1)
        post = []
        if ks + HD < NK:
            for s in hload(ks + HD):
                post.append(s); seq.append(('h', ks + HD))
        interleave(a, mf, pre)
        for s in post: a(s)
    stamp(a, 4)
    return dict(acc=acc, sP=sP, sT=sT, vG=vG, vN=vN, vL=vL, nv=acc + 64)

def reduce_B2(a, r, LB=0, barrier=lambda a: a("s_barrier")):
    acc = r['acc']; sW = 3
    vA = 10; vB = 11; t0 = 12
    res = 16
    barrier(a)
    a(f"v_lshlrev_b32 v{vA}, 4, v{r['vL']}")
    a(f"s_lshl_b32 s22, s{sW}, 14")
    if LB: a(f"s_add_u32 s22, s22, {LB}")
    a(f"v_add_u32 v{vB}, s22, v{vA}")
    for tile in range(16):
        a(f"ds_write_b128 v{vB}, v[{acc+4*tile}:{acc+4*tile+3}] offset:{tile*1024}")
    a(f"s_lshl_b32 s22, s{r['sT']}, 7")
    a(f"s_lshl_b32 s23, s{sW}, 5")
    a(f"s_add_u32 s22, s22, s23")
    a(f"v_lshlrev_b32 v{t0}, 3, v{r['vG']}")
    a(f"buffer_load_dwordx2 v[14:15], v{t0}, s[16:19], s22 offen")
    a("s_waitcnt lgkmcnt(0)")
    barrier(a)
    a(f"s_lshl_b32 s22, s{sW}, 12")
    if LB: a(f"s_add_u32 s22, s22, {LB}")
    a(f"v_add_u32 v{vB}, s22, v{vA}")
    for src in range(4):
        for nt in range(4):
            d = 48 + 16*src + 4*nt
            a(f"ds_read_b128 v[{d}:{d+3}], v{vB} offset:{src*16384 + nt*1024}")
    a("s_waitcnt vmcnt(0)")
    a("v_lshlrev_b32 v12, 16, v14\nv_and_b32 v13, 0xffff0000, v14\nv_lshlrev_b32 v14, 16, v15\nv_and_b32 v15, 0xffff0000, v15")
    a("s_waitcnt lgkmcnt(0)")
    for nt in range(4):
        for h in range(2):
            x = 48 + 4*nt + 2*h
            a(f"v_pk_add_f32 v[{x}:{x+1}], v[{x}:{x+1}], v[{x+16}:{x+17}]")
            a(f"v_pk_add_f32 v[{x+32}:{x+33}], v[{x+32}:{x+33}], v[{x+48}:{x+49}]")
            a(f"v_pk_add_f32 v[{x}:{x+1}], v[{x}:{x+1}], v[{x+32}:{x+33}]")
            a(f"v_pk_add_f32 v[{res+4*nt+2*h}:{res+4*nt+2*h+1}], v[{x}:{x+1}], v[{12+2*h}:{13+2*h}]")
    r['res'] = res

def kernel_B2(name, R=6, HD=3, prof=False, exp=''):
    a = HAsm(); a.prof = prof
    stamp(a, 0, real=True); stamp(a, 1)
    a("s_cmp_ge_u32 s2, 256")
    a("s_cbranch_scc1 L_B2_end")
    load_srd(a, 8, "w2"); load_srd(a, 12, "ws"); load_srd(a, 16, "b2")
    wave_id(a, 3, 1)
    a("s_waitcnt lgkmcnt(0)")
    fin_srd(a, 8, "w2"); fin_srd(a, 12, "ws", WS_SIZE); fin_srd(a, 16, "b2")
    r = gen_B2(a, exp=exp, R=R, HD=HD, ld_sc="")
    reduce_B2(a, r)
    a("s_lshl_b32 s22, s2, 2\ns_add_u32 s22, s22, s3\ns_lshl_b32 s22, s22, 12")
    a(f"s_add_u32 s22, s22, {WS_BT}")
    a("v_lshlrev_b32 v10, 4, v0")
    for nt in range(4):
        a(f"buffer_store_dwordx4 v[{r['res']+4*nt}:{r['res']+4*nt+3}], v10, s[12:15], s22 offen offset:{nt*1024}")
    stamp(a, 5)
    if prof: a("s_waitcnt vmcnt(0)")
    stamp(a, 6); stamp(a, 7, real=True)
    dump_stamps(a, 8)
    a.fence()
    a.label("L_B2_end")
    a("s_endpgm")
    return (name, a.text(), r['nv'], 0, 100), max(4*R*4096, 65536)

if __name__ == "__main__":
    for R, HD in ((6, 3), (4, 2), (8, 5)):
        k, lds = kernel_B2(KNAME, R=R, HD=HD, prof=True)
        open(f"b2_r{R}.s", "w").write(build_file([k], [(KNAME, 256, 256, lds)]))
        print("lds", lds, "vgprs", k[2], "lines", k[1].count("\n"))
```

```python
from asmlib import *
from hz import HAsm

WS_U = 0
WS_ZO = 2 << 20
WS_H = 4 << 20
H_P = 88 * 2048
WS_GL = 10 << 20
WS_BT = 11 << 20
WS_FL = 15 << 20
WS_SIZE = 16 << 20

def lane_decomp(a, vl, vg, vn):
    a(f"v_lshrrev_b32 v{vg}, 4, v{vl}")
    a(f"v_and_b32 v{vn}, 15, v{vl}")

def wave_id(a, sw, vtmp, mask=3):
    a(f"v_lshrrev_b32 v{vtmp}, 6, v0")
    a(f"v_readfirstlane_b32 s{sw}, v{vtmp}")
    a(f"v_and_b32 v0, 63, v0")
    a(f"s_and_b32 s{sw}, s{sw}, {mask}")

def interleave(a, primary, secondary, ratio=None, lead=0):
    n, m = len(primary), len(secondary)
    si = 0
    for _ in range(min(lead, m)):
        a(secondary[si]); si += 1
    for i, p in enumerate(primary):
        a(p)
        tgt = lead + ((i + 1) * (m - lead) + n - 1) // n if n else m
        while si < min(tgt, m):
            a(secondary[si]); si += 1
    while si < m:
        a(secondary[si]); si += 1

WS_DBG = 14 << 20
STAMP_S0 = 64
def stamp(a, idx, real=False):
    if not getattr(a, "prof", False): return
    a(f"s_waitcnt lgkmcnt(0)")
    a(f"{'s_memrealtime' if real else 's_memtime'} s[{STAMP_S0+2*idx}:{STAMP_S0+2*idx+1}]")
    a(f"s_waitcnt lgkmcnt(0)")
def dump_stamps(a, n, sw=3, ws_srd=12, vt=1, nw=4):
    if not getattr(a, "prof", False): return
    a(f"s_waitcnt vmcnt(0) lgkmcnt(0)")
    a(f"s_mul_i32 s62, s2, {nw}")
    a(f"s_add_u32 s62, s62, s{sw}")
    a(f"s_lshl_b32 s62, s62, 6")
    a(f"s_add_u32 s62, s62, {WS_DBG}")
    a(f"v_mov_b32 v{vt+1}, 0")
    for i in range(n):
        a(f"v_mov_b32 v{vt}, s{STAMP_S0+2*i}")
        a(f"s_mov_b64 exec, 1")
        a(f"buffer_store_dword v{vt}, v{vt+1}, s[{ws_srd}:{ws_srd+3}], s62 offen offset:{4*i}")
        a(f"s_mov_b64 exec, -1")
    a(f"s_waitcnt vmcnt(0)")

class MOD:
    x = ""; w1 = ""; w2 = ""; W = ""; out = ""
```

```python
import re
from asmlib import Asm

REG = re.compile(r'(-|\|)?\b([vas])(\d+)\b|\b([vas])\[(\d+):(\d+)\]|\b(vcc|exec|m0|vcc_lo|vcc_hi|exec_lo|exec_hi|scc)\b')

def regs_of(tok):
    out = set()
    for m in re.finditer(r'\b([vas])\[(\d+):(\d+)\]|\b([vas])(\d+)\b|\b(vcc_lo|vcc_hi|vcc|exec_lo|exec_hi|exec|m0)\b', tok):
        if m.group(1):
            for i in range(int(m.group(2)), int(m.group(3)) + 1):
                out.add(m.group(1) + str(i))
        elif m.group(4):
            out.add(m.group(4) + m.group(5))
        else:
            n = m.group(6)
            out.add('vcc' if n.startswith('vcc') else 'exec' if n.startswith('exec') else n)
    return out

TRANS = ('v_exp_f32', 'v_log_f32', 'v_rcp_f32', 'v_rsq_f32', 'v_sqrt_f32', 'v_sin_f32', 'v_cos_f32', 'v_rcp_iflag_f32')

class Ins:
    __slots__ = ('op', 'dst', 'src', 'kind', 'passes', 'csrc', 'text', 'dpp', 'storedata', 'ldsdma')

def parse(text):
    t = text.split(';')[0].strip()
    parts = t.split(None, 1)
    op = parts[0]
    rest = parts[1] if len(parts) > 1 else ''
    ops = [o.strip() for o in re.split(r',(?![^\[]*\])', rest)] if rest else []
    I = Ins(); I.op = op; I.text = text; I.dst = set(); I.src = set(); I.csrc = set(); I.passes = 0
    I.dpp = ('quad_perm' in t or 'row_ror' in t or 'row_shr' in t or 'row_shl' in t or 'row_bcast' in t or 'row_mirror' in t or 'row_half_mirror' in t or 'row_newbcast' in t)
    I.storedata = set(); I.ldsdma = False
    if op.startswith('v_mfma'):
        I.kind = 'mfma'
        I.passes = 8 if '32x32' in op else 4
        I.dst = regs_of(ops[0]); I.src = regs_of(ops[1]) | regs_of(ops[2]); I.csrc = regs_of(ops[3].split()[0])
    elif op.startswith('buffer_') or op.startswith('global_'):
        I.kind = 'vmem'
        last = ops[-1]
        if ' lds' in (' ' + last) or op.startswith('global_load_lds'):
            I.ldsdma = True
            for o in ops: I.src |= regs_of(o)
            I.src.add('m0')
        elif 'store' in op or ('atomic' in op and 'sc0' not in last):
            for o in ops: I.src |= regs_of(o)
            if 'x4' in op or 'x3' in op:
                I.storedata = regs_of(ops[0]) if op.startswith('buffer_') else regs_of(ops[1])
        elif op in ('buffer_wbl2', 'buffer_inv'):
            pass
        else:
            I.dst = regs_of(ops[0])
            for o in ops[1:]: I.src |= regs_of(o)
            if 'atomic' in op: I.src |= regs_of(ops[0])
    elif op.startswith('ds_'):
        I.kind = 'ds'
        if op.startswith('ds_read') or op.startswith('ds_bpermute') or op.startswith('ds_permute') or op.startswith('ds_swizzle') or '_rtn' in op:
            I.dst = regs_of(ops[0])
            for o in ops[1:]: I.src |= regs_of(o)
        else:
            for o in ops: I.src |= regs_of(o)
    elif op.startswith('v_'):
        I.kind = 'valu'
        if op.startswith('v_cmpx'):
            raise Exception("avoid v_cmpx")
        if op.startswith('v_cmp'):
            I.dst = regs_of(ops[0])
            for o in ops[1:]: I.src |= regs_of(o)
        elif op in ('v_swap_b32',) or op.startswith('v_permlane'):
            I.dst = regs_of(ops[0]) | regs_of(ops[1]); I.src = set(I.dst)
        elif op.startswith('v_add_co') or op.startswith('v_sub_co') or op.startswith('v_addc_co') or op.startswith('v_subb_co'):
            I.dst = regs_of(ops[0]) | regs_of(ops[1])
            for o in ops[2:]: I.src |= regs_of(o)
        else:
            I.dst = regs_of(ops[0])
            for o in ops[1:]: I.src |= regs_of(o)
            if op.startswith('v_fmac') or op.startswith('v_mac') or op.startswith('v_dot2c') or op.startswith('v_writelane') or op.startswith('v_pk_fmac'):
                I.src |= I.dst
            if op.startswith('v_cndmask') and len(ops) == 3:
                I.src.add('vcc')
            if I.dpp and not op.startswith('v_mov'):
                pass
    elif op.startswith('s_'):
        I.kind = 'salu'
        if op in ('s_waitcnt', 's_nop', 's_barrier', 's_endpgm', 's_sleep', 's_setprio') or op.startswith('s_cbranch') or op == 's_branch':
            pass
        elif op.startswith('s_cmp') or op.startswith('s_bitcmp'):
            for o in ops: I.src |= regs_of(o)
        else:
            I.dst = regs_of(ops[0])
            for o in ops[1:]: I.src |= regs_of(o)
            if 'saveexec' in op: I.dst.add('exec')
    else:
        raise Exception("unknown op " + op)
    return I

def check_offsets(text):
    t = text.split(';')[0]
    op = t.split()[0]
    m = re.search(r'\boffset:(-?\d+|0x[0-9a-fA-F]+)', t)
    if m:
        v = int(m.group(1), 0)
        if op.startswith('buffer_'):
            assert 0 <= v < 4096, text
        elif op.startswith('ds_'):
            assert 0 <= v < 65536, text
        elif op.startswith('global_'):
            assert -4096 <= v < 4096, text
    for m in re.finditer(r'\boffset[01]:(\d+)', t):
        assert int(m.group(1)) < 256, text

class HAsm(Asm):
    WINDOW = 24
    def __init__(self):
        super().__init__()
        self.hist = []
        self.pos = 0
        self.nops = 0
    def __call__(self, s=""):
        for l in s.split("\n"):
            l = l.strip()
            if not l:
                continue
            if l.startswith(';'):
                self.lines.append("    " + l); continue
            if l.endswith(':'):
                self.lines.append(l); continue
            self.emit(l)
    def need(self, I):
        n = 0
        for (P, pos) in self.hist:
            d = self.pos - pos - 1
            w = 0
            isv = lambda regs: {r for r in regs if r[0] in 'va' and r != 'vcc'}
            if P.kind == 'valu':
                pv = isv(P.dst)
                ps = {r for r in P.dst if r[0] == 's' or r == 'vcc'}
                if I.kind == 'mfma' and pv & (I.src | I.csrc): w = max(w, 2)
                if I.kind == 'valu':
                    if I.dpp and pv & I.src: w = max(w, 2)
                    if I.op.startswith('v_permlane') and pv & I.src: w = max(w, 2)
                    if I.op.startswith('v_readfirstlane') or I.op.startswith('v_readlane'):
                        if pv & I.src: w = max(w, 1)
                        if ps & I.src: w = max(w, 4)
                    if P.op.replace('_e32', '').replace('_e64', '') in TRANS and I.op not in TRANS and pv & (I.src | I.dst): w = max(w, 1)
                    if P.op in TRANS and pv & I.src: w = max(w, 1)
                    if ps & I.src: w = max(w, 2)
                if I.kind == 'vmem' and ps & I.src: w = max(w, 5)
                if I.kind == 'salu' and ps & I.src: w = max(w, 4)
                if I.kind == 'ds' and ps & I.src: w = max(w, 5)
            if P.kind == 'mfma':
                big = P.passes == 8
                if I.kind == 'mfma':
                    if P.dst & I.src: w = max(w, 12 if big else 8)
                    if P.dst & I.csrc:
                        if not (P.dst == I.csrc and P.passes == I.passes): w = max(w, 10 if big else 6)
                    if P.dst & I.dst and not (P.dst == I.csrc):
                        w = max(w, 10 if big else 6)
                elif I.kind in ('valu', 'vmem', 'ds'):
                    if P.dst & (I.src | I.dst): w = max(w, 12 if big else 8)
                    if I.kind == 'valu' and P.csrc & I.dst: w = max(w, 7 if big else 3)
            if P.kind == 'salu' and 'm0' in P.dst and I.ldsdma: w = max(w, 1)
            if P.kind == 'vmem' and P.storedata and (P.storedata & I.dst):
                w = max(w, 2)
            n = max(n, w - d)
        return n
    def emit(self, l):
        check_offsets(l)
        I = parse(l)
        if I.op == 's_nop':
            k = int(l.split()[1], 0) + 1
            self.lines.append("    " + l)
            self.pos += k
            return
        n = self.need(I)
        while n > 0:
            k = min(n, 16)
            self.lines.append(f"    s_nop {k-1}")
            self.pos += k; self.nops += k; n -= k
        self.lines.append("    " + l)
        self.hist.append((I, self.pos))
        self.pos += 1
        self.hist = [(P, p) for (P, p) in self.hist if self.pos - p <= self.WINDOW]
    def fence(self, n=12):
        if not self.hist: return
        last = max(p for _, p in self.hist)
        pend = 0
        for (P, p) in self.hist:
            if P.kind == 'mfma': need = 12 if P.passes == 8 else 8
            elif P.kind == 'valu': need = 5
            else: need = 2
            pend = max(pend, need - (self.pos - p - 1))
        while pend > 0:
            k = min(pend, 16)
            self.lines.append(f"    s_nop {k-1}")
            self.pos += k; pend -= k
        self.hist = []
```

```python
import sys
from common import *
import a1, a2, a3, b1, b2
def build(prof=False):
    ks = []; ls = []
    for nm, fn, kw in (("a1_kernel", a1.kernel_A1, {}), ("b1_kernel", b1.kernel_B1, {}), ("a2_kernel", a2.kernel_A2, {}), ("b2_kernel", b2.kernel_B2, {}), (KNAME, a3.kernel_A3, {})):
        k, lds = fn(nm, prof=prof, **kw)
        ks.append(k); ls.append((nm, 256, 256, lds))
    return build_file(ks, ls)
if __name__ == "__main__":
    open("multi.s", "w").write(build())
```

```python
from common import *
from b2 import decode_pt
import struct
def f2u(x): return struct.unpack('<I', struct.pack('<f', x))[0]

def swz128_dma(a, vdst, vL, t0, t1, t2, par, rowstride):
    a(f"v_lshrrev_b32 v{t0}, 3, v{vL}")
    a(f"v_bfe_u32 v{t1}, v{t0}, 1, 1")
    if par: a(f"v_or_b32 v{t1}, 2, v{t1}")
    a(f"v_bfe_u32 v{t2}, v{vL}, 1, 2")
    a(f"v_xor_b32 v{t1}, v{t1}, v{t2}")
    a(f"v_lshlrev_b32 v{t1}, 5, v{t1}")
    a(f"v_and_b32 v{t2}, 1, v{vL}")
    a(f"v_lshl_add_u32 v{t1}, v{t2}, 4, v{t1}")
    a(f"v_mul_u32_u24 v{t0}, {rowstride}, v{t0}")
    a(f"v_add_u32 v{vdst}, v{t0}, v{t1}")

def tr128_base(a, vdst, vG, vN, t0, t1, t2):
    a(f"v_lshrrev_b32 v{t0}, 2, v{vN}")
    a(f"v_lshl_add_u32 v{t1}, v{vG}, 3, v{t0}")
    a(f"v_lshlrev_b32 v{t1}, 7, v{t1}")
    a(f"v_lshrrev_b32 v{t0}, 1, v{t0}")
    a(f"v_and_b32 v{t2}, 1, v{vG}")
    a(f"v_lshl_add_u32 v{t0}, v{t2}, 1, v{t0}")
    a(f"v_lshl_add_u32 v{t1}, v{t0}, 5, v{t1}")
    a(f"v_and_b32 v{t0}, 3, v{vN}")
    a(f"v_lshl_add_u32 v{vdst}, v{t0}, 3, v{t1}")

def gen_A1(a, LA=0, sc=" sc1", barrier=lambda a: a("s_barrier"), full_lines=False, gate_wave=0, decode=None, after_dma=None, regs=None, pre_wait=None):
    sW = 3
    R = dict(sA=22, sB=23, sC=24, vD=[3, 4], t=[5, 6, 7, 8], vT=[9, 10, 11, 12], vS=13, vXg=[14, 15], F=16, gwf=24, xf=32, acc=64, gx=80, gacc=112)
    R.update(regs or {})
    sP, sT, sA, sB, sC = 20, 21, R['sA'], R['sB'], R['sC']
    vL = 0; vG, vN = 1, 2
    vD = R['vD']
    t0, t1, t2, t3 = R['t']
    vT = R['vT']
    vS = R['vS']
    vXg = R['vXg']
    F = R['F']
    gwf = R['gwf']
    xf = R['xf']
    acc = R['acc']
    gx = R['gx']
    gacc = R['gacc']
    (decode or decode_pt)(a, sP, sT, sA)
    lane_decomp(a, vL, vG, vN)
    for par in range(2):
        swz128_dma(a, vD[par], vL, t0, t1, t2, par, 32768)
    a(f"s_lshl_b32 s{sA}, s{sP}, 10")
    a(f"s_lshl_b32 s{sB}, s{sT}, 7")
    a(f"s_add_u32 s{sA}, s{sA}, s{sB}")
    a(f"s_lshl_b32 s{sB}, s{sW}, 19")
    a(f"s_add_u32 s{sB}, s{sB}, s{sA}")
    a(f"s_lshl_b32 s{sC}, s{sW}, 11")
    if LA: a(f"s_add_u32 s{sC}, s{sC}, {LA}")
    a(f"s_mov_b32 m0, s{sC}")
    a(f"buffer_load_dwordx4 v{vD[0]}, s[4:7], s{sB} offen{MOD.x} lds")
    a(f"s_add_u32 m0, s{sC}, 1024")
    a(f"s_add_u32 s{sB}, s{sB}, {8*32768}")
    a(f"buffer_load_dwordx4 v{vD[1]}, s[4:7], s{sB} offen{MOD.x} lds")
    stamp(a, 9)
    if after_dma: after_dma(a)
    a(f"v_lshlrev_b32 v{t0}, 4, v{vG}")
    a(f"s_lshl_b32 s{sB}, s{sT}, 7")
    for ks in range(2):
        a(f"buffer_load_dwordx4 v[{gwf+4*ks}:{gwf+4*ks+3}], v{t0}, s[16:19], s{sB} offen offset:{64*ks}")
    a(f"s_lshl_b32 s{sB}, s{sW}, 4")
    a(f"v_add_u32 v{t0}, s{sB}, v{vN}")
    a(f"v_subrev_u32 v{t1}, 32, v{t0}")
    a(f"v_cmp_lt_u32 vcc, 32, v{t0}")
    a(f"v_cndmask_b32 v{t0}, v{t0}, v{t1}, vcc")
    a(f"v_cvt_f32_u32 v{t0}, v{t0}")
    a(f"v_mul_f32 v{t0}, 0x{f2u(1/64):08x}, v{t0}")
    a(f"v_mov_b32 v{t1}, 0")
    a(f"v_mov_b32 v{t2}, 0x{f2u(-0.25):08x}")
    a(f"v_cndmask_b32 v{t1}, v{t1}, v{t2}, vcc")
    a(f"v_lshlrev_b32 v{t2}, 3, v{vG}")
    a(f"v_cvt_f32_u32 v{t2}, v{t2}")
    a(f"v_fma_f32 v{t1}, v{t2}, v{t0}, v{t1}")
    tmp = xf
    for ks in range(2):
        for e in range(8):
            k = 32*ks + e
            if k == 0: a(f"v_cos_f32 v{tmp}, v{t1}")
            else:
                a(f"v_fmamk_f32 v{tmp+ks*8+e}, v{t0}, 0x{f2u(float(k)):08x}, v{t1}")
                a(f"v_cos_f32 v{tmp+ks*8+e}, v{tmp+ks*8+e}")
    for ks in range(2):
        for h in range(4):
            a(f"v_cvt_pk_bf16_f32 v{F+4*ks+h}, v{tmp+ks*8+2*h}, v{tmp+ks*8+2*h+1}")
    stamp(a, 10)
    tr128_base(a, t3, vG, vN, t0, t1, t2)
    for mt in range(4):
        a(f"v_xor_b32 v{vT[mt]}, {mt*32}, v{t3}")
        if LA: a(f"v_add_u32 v{vT[mt]}, {LA}, v{vT[mt]}")
    a(f"v_bfe_u32 v{t0}, v{vN}, 1, 1")
    a(f"v_bfe_u32 v{t1}, v{vN}, 3, 1")
    a(f"v_lshl_add_u32 v{t0}, v{t1}, 1, v{t0}")
    a(f"v_lshrrev_b32 v{t1}, 1, v{vG}")
    a(f"v_xor_b32 v{t0}, v{t0}, v{t1}")
    a(f"v_lshlrev_b32 v{t0}, 5, v{t0}")
    a(f"v_and_b32 v{t1}, 1, v{vG}")
    a(f"v_lshl_add_u32 v{t0}, v{t1}, 4, v{t0}")
    a(f"v_lshl_add_u32 v{vXg[0]}, v{vN}, 7, v{t0}")
    if LA: a(f"v_add_u32 v{vXg[0]}, {LA}, v{vXg[0]}")
    a(f"v_xor_b32 v{vXg[1]}, 64, v{vXg[0]}")
    a(f"v_and_b32 v{t0}, 1, v{vG}")
    a(f"v_lshlrev_b32 v{t0}, 5, v{t0}")
    a(f"v_lshrrev_b32 v{t1}, 1, v{vG}")
    a(f"v_lshl_add_u32 v{t0}, v{t1}, 4, v{t0}")
    if not full_lines:
        a(f"v_lshl_add_u32 v{vS}, v{vN}, 15, v{t0}")
    else:
        a(f"v_and_b32 v{t1}, 7, v{vN}")
        a(f"v_lshl_add_u32 v{t0}, v{t1}, 15, v{t0}")
        a(f"v_lshrrev_b32 v{t1}, 3, v{vN}")
        a(f"v_lshl_add_u32 v{vS}, v{t1}, 6, v{t0}")
    a(f"s_lshl_b32 s{sB}, s{sW}, 19")
    a(f"s_add_u32 s{sB}, s{sB}, s{sA}")
    if WS_U: a(f"s_add_u32 s{sB}, s{sB}, {WS_U}")
    if pre_wait: pre_wait(a)
    stamp(a, 2)
    a("s_waitcnt vmcnt(0)")
    barrier(a)
    stamp(a, 3)
    for mt in range(4):
        for ks in range(2):
            for h in range(2):
                r = xf + 8*mt + 4*ks + 2*h
                a(f"ds_read_b64_tr_b16 v[{r}:{r+1}], v{vT[mt]} offset:{ks*4096 + h*512}")
    lab = a.newlabel("A1g")
    a.fence()
    a(f"s_cmp_lg_u32 s{sW}, {gate_wave}")
    a(f"s_cbranch_scc1 {lab}")
    for nt in range(4):
        for ks in range(2):
            r = gx + 8*nt + 4*ks
            a(f"ds_read_b128 v[{r}:{r+3}], v{vXg[ks]} offset:{nt*2048}")
    a("s_waitcnt lgkmcnt(0)")
    for ks in range(2):
        for nt in range(4):
            d = gacc + 4*nt; r = gx + 8*nt + 4*ks
            c = "0" if ks == 0 else f"v[{d}:{d+3}]"
            a(f"v_mfma_f32_16x16x32_bf16 v[{d}:{d+3}], v[{gwf+4*ks}:{gwf+4*ks+3}], v[{r}:{r+3}], {c}")
    for nt in range(1, 4):
        a(f"v_mov_b32 v{gacc+nt}, v{gacc+4*nt}")
    a(f"s_lshl_b32 s{sC}, s{sP}, 3")
    a(f"s_add_u32 s{sC}, s{sC}, s{sT}")
    a(f"s_lshl_b32 s{sC}, s{sC}, 8")
    a(f"s_add_u32 s{sC}, s{sC}, {WS_GL}")
    a(f"v_lshlrev_b32 v{t0}, 4, v{vN}")
    a("s_mov_b64 exec, 0xffff")
    a(f"buffer_store_dwordx4 v[{gacc}:{gacc+3}], v{t0}, s[12:15], s{sC} offen{sc}")
    a("s_mov_b64 exec, -1")
    a.fence()
    a.label(lab)
    a("s_waitcnt lgkmcnt(0)")
    for ks in range(2):
        for mt in range(4):
            d = acc + 4*mt; r = xf + 8*mt + 4*ks
            c = "0" if ks == 0 else f"v[{d}:{d+3}]"
            a(f"v_mfma_f32_16x16x32_bf16 v[{d}:{d+3}], v[{r}:{r+3}], v[{F+4*ks}:{F+4*ks+3}], {c}")
    pk = xf
    for mt in range(4):
        for h in range(2):
            r = pk + 4*(mt >> 1) + 2*(mt & 1) + h
            a(f"v_cvt_pk_bf16_f32 v{r}, v{acc+4*mt+2*h}, v{acc+4*mt+2*h+1}")
    for pair in range(2):
        b = pk + 4*pair
        a(f"v_permlane16_swap_b32 v{b}, v{b+2}")
        a(f"v_permlane16_swap_b32 v{b+1}, v{b+3}")
    if not full_lines:
        for pair in range(2):
            b = pk + 4*pair
            a(f"buffer_store_dwordx4 v[{b}:{b+3}], v{vS}, s[12:15], s{sB} offen offset:{pair*64}{sc}")
    else:
        X = pk; Y = pk + 4; Yr = pk + 8; SA = pk + 12; SB = pk + 16
        a(f"v_cmp_gt_u32 vcc, 8, v{vN}")
        for i in range(4):
            a(f"v_mov_b32_dpp v{Yr+i}, v{Y+i} row_ror:8 row_mask:0xf bank_mask:0xf")
        for i in range(4):
            a(f"v_cndmask_b32 v{SA+i}, v{Yr+i}, v{X+i}, vcc")
            a(f"v_cndmask_b32 v{SB+i}, v{X+i}, v{Yr+i}, vcc")
        a(f"buffer_store_dwordx4 v[{SA}:{SA+3}], v{vS}, s[12:15], s{sB} offen{sc}")
        a(f"v_xor_b32 v{vS}, 64, v{vS}")
        a(f"s_add_u32 s{sB}, s{sB}, {8*32768}")
        a(f"buffer_store_dwordx4 v[{SB}:{SB+3}], v{vS}, s[12:15], s{sB} offen{sc}")
    return dict(nv=128, sP=sP, sT=sT)

def kernel_A1(name, prof=False, **kw):
    a = HAsm(); a.prof = prof
    a("s_cmp_ge_u32 s2, 256")
    a(f"s_cbranch_scc1 L_{name}_end")
    stamp(a, 0, real=True); stamp(a, 1)
    load_srd(a, 4, "xA"); load_srd(a, 12, "ws"); load_srd(a, 16, "gw")
    wave_id(a, 3, 1)
    a("s_waitcnt lgkmcnt(0)")
    stamp(a, 8)
    fin_srd(a, 4, "xA"); fin_srd(a, 12, "ws", WS_SIZE); fin_srd(a, 16, "gw")
    r = gen_A1(a, **kw)
    stamp(a, 5)
    if prof: a("s_waitcnt vmcnt(0)")
    stamp(a, 6); stamp(a, 7, real=True)
    dump_stamps(a, 11)
    a.fence()
    a.label(f"L_{name}_end")
    a("s_endpgm")
    return (name, a.text(), r['nv'], 0, 100), 8192

if __name__ == "__main__":
    for fl in (False, True):
        k, lds = kernel_A1(KNAME, prof=True, full_lines=fl)
        open(f"a1_{int(fl)}.s", "w").write(build_file([k], [(KNAME, 256, 256, lds)]))
        print("lds", lds, "vgprs", k[2], "lines", k[1].count("\n"))
```

```python
from common import *
from b2 import decode_pt
from a1 import f2u

class A2:
    sQ, sJ, sA, sB, sC, sKA, sKap, sPass = 20, 21, 22, 23, 24, 25, 26, 27
    sEta = 28
    vL, vG, vN = 0, 1, 2
    t0, t1, t2, t3 = 3, 4, 5, 6
    vMu, vNMu = 7, 8
    vX = [9, 10, 11, 12]
    vS = 13
    vDm = [14, 15, 224, 225]
    SET2 = 16
    T = 64
    XF = 128
    ACC = 160
    SET1 = 176
    SAVE = 226
    NV = 240
    def __init__(self, a, LU=0, LW=65536, LW2=65536+8192, LF=65536+16384, sc=" sc1", ld_sc=" sc1", barrier=None, WR="s[4:7]", WI="s[8:11]", OUT="s[4:7]"):
        self.WR = WR; self.WI = WI; self.OUT = OUT
        self.a = a; self.LU = LU; self.LW = LW; self.LW2 = LW2; self.LF = LF; self.sc = sc; self.ld_sc = ld_sc
        self.barrier = barrier or (lambda a: a("s_barrier"))

    def decode(self):
        a = self.a
        decode_pt(a, self.sQ, self.sJ, self.sA)
        lane_decomp(a, self.vL, self.vG, self.vN)

    def w_dma(self):
        a = self.a; t0, t1, t2, t3 = self.t0, self.t1, self.t2, self.t3
        sW = 3
        def one(ska, lds):
            a(f"v_lshrrev_b32 v{t0}, 2, v{self.vL}")
            a(f"v_lshlrev_b32 v{t0}, 6, v{t0}")
            a(f"v_add_u32 v{t0}, {ska}, v{t0}")
            a(f"v_and_b32 v{t1}, 3, v{self.vL}")
            a(f"v_xor_b32 v{t1}, v{t1}, v{self.vG}")
            a(f"v_lshlrev_b32 v{t1}, 4, v{t1}")
            a(f"s_lshl_b32 s{self.sA}, s{self.sJ}, 6")
            a(f"v_add_u32 v{t1}, s{self.sA}, v{t1}")
            a(f"s_lshl_b32 s{self.sB}, s{sW}, 11")
            a(f"s_add_u32 s{self.sB}, s{self.sB}, {lds}")
            a(f"s_cmp_ge_u32 s{sW}, 2")
            a(f"s_cselect_b64 vcc, -1, 0")
            lab_i = a.newlabel("A2wi"); lab_e = a.newlabel("A2we")
            for kt in range(2):
                a(f"v_add_u32 v{t2}, {1024*kt}, v{t0}")
                a(f"v_sub_u32 v{t3}, 2048, v{t2}")
                a(f"v_and_b32 v{t3}, 2047, v{t3}")
                a(f"v_cndmask_b32 v{t2}, v{t2}, v{t3}, vcc")
                a(f"v_mul_u32_u24 v{t2}, 514, v{t2}")
                a(f"v_add_u32 v{self.vDm[kt]}, v{t2}, v{t1}")
            a(f"s_add_u32 s{self.sC}, s{sW}, 1")
            a(f"s_bitcmp1_b32 s{self.sC}, 1")
            a.fence()
            a(f"s_cbranch_scc1 {lab_i}")
            for kt in range(2):
                a(f"s_add_u32 m0, s{self.sB}, {kt*1024}")
                a(f"buffer_load_dwordx4 v{self.vDm[kt]}, {self.WR}, 0 offen{MOD.W} lds")
            a(f"s_branch {lab_e}")
            a.label(lab_i)
            for kt in range(2):
                a(f"s_add_u32 m0, s{self.sB}, {kt*1024}")
                a(f"buffer_load_dwordx4 v{self.vDm[kt]}, {self.WI}, 0 offen{MOD.W} lds")
            a.fence()
            a.label(lab_e)
        one(f"s{self.sQ}", self.LW)
        lab = a.newlabel("A2w2")
        a(f"s_cmp_lg_u32 s{self.sQ}, 0")
        a(f"s_cbranch_scc1 {lab}")
        a(f"s_mov_b32 s{self.sKA}, 32")
        one(f"s{self.sKA}", self.LW2)
        a.fence()
        a.label(lab)

    def table(self):
        a = self.a; t0, t1, t2, t3 = self.t0, self.t1, self.t2, self.t3
        sW = 3
        a(f"s_lshl_b32 s{self.sA}, s{self.sJ}, 5")
        a(f"s_lshl_b32 s{self.sB}, s{sW}, 3")
        a(f"s_add_u32 s{self.sA}, s{self.sA}, s{self.sB}")
        a(f"v_lshrrev_b32 v{t0}, 1, v{self.vN}")
        a(f"v_add_u32 v{t0}, s{self.sA}, v{t0}")
        a(f"v_cmp_eq_u32 vcc, 0, v{t0}")
        a(f"v_mov_b32 v{t1}, 1.0")
        a(f"v_cndmask_b32_e64 v{self.vMu}, 1.0, 0, vcc")
        a(f"v_cndmask_b32_e64 v{self.vNMu}, -1.0, 0, vcc")
        a(f"v_cvt_f32_u32 v{t0}, v{t0}")
        a(f"v_mul_f32 v{t0}, 0x{f2u(1/512):08x}, v{t0}")
        a(f"v_and_b32 v{t1}, 1, v{self.vN}")
        a(f"v_cvt_f32_u32 v{t2}, v{t1}")
        a(f"v_mul_f32 v{t2}, 0x{f2u(-0.25):08x}, v{t2}")
        a(f"v_cvt_f32_u32 v{t1}, v{t1}")
        a(f"v_cndmask_b32_e64 v{t1}, 0, v{t1}, vcc")
        a(f"v_fma_f32 v{t0}, v{t1}, 0.5, v{t0}")
        a(f"v_mul_f32 v{t3}, 0x{f2u(0.25):08x}, v{t1}")
        a(f"v_add_f32 v{t2}, v{t2}, v{t3}")
        a(f"v_lshlrev_b32 v{t1}, 3, v{self.vG}")
        a(f"v_cvt_f32_u32 v{t1}, v{t1}")
        a(f"v_fma_f32 v{t2}, v{t1}, v{t0}, v{t2}")
        self.cheb_table(self.T, t0, lambda e: t2, 32.0, lambda e: float(e))

    def cheb_table(self, T, vf, argsel, step, efun):
        a = self.a
        A = self.XF; B = self.XF + 8; K2 = self.XF + 16
        a(f"v_mul_f32 v{K2}, 0x{f2u(step):08x}, v{vf}")
        a(f"v_cos_f32 v{K2}, v{K2}")
        for e in range(8):
            for bank, off in ((A, 0.0), (B, step)):
                k = efun(e) + off
                if k == 0: a(f"v_cos_f32 v{bank+e}, v{argsel(e)}")
                else:
                    a(f"v_fmamk_f32 v{bank+e}, v{vf}, 0x{f2u(k):08x}, v{argsel(e)}")
                    a(f"v_cos_f32 v{bank+e}, v{bank+e}")
        a(f"v_add_f32 v{K2}, v{K2}, v{K2}")
        self.patch_seed(A, B)
        for ks in range(16):
            cur = A if ks % 2 == 0 else B
            oth = B if ks % 2 == 0 else A
            if ks >= 2:
                for e in range(8):
                    a(f"v_fma_f32 v{cur+e}, v{K2}, v{oth+e}, -v{cur+e}")
            self.pack_ks(T, ks, cur)
    def patch_seed(self, A, B): pass
    def pack_ks(self, T, ks, cur):
        for h in range(4):
            self.a(f"v_cvt_pk_bf16_f32 v{T+4*ks+h}, v{cur+2*h}, v{cur+2*h+1}")

    def mmats(self, base, ska):
        a = self.a; t0, t1, t2, t3 = self.t0, self.t1, self.t2, self.t3
        tc = self.XF; ts = self.XF + 8; ar = self.XF + 16
        ce = [16*(e >> 2) + (e & 3) for e in range(8)]
        a(f"v_lshlrev_b32 v{t3}, 2, v{self.vG}")
        a(f"v_cvt_f32_u32 v{t3}, v{t3}")
        for kt in range(2):
            a(f"v_lshlrev_b32 v{t0}, 6, v{self.vN}")
            a(f"v_add_u32 v{t0}, {ska}, v{t0}")
            if kt: a(f"v_add_u32 v{t0}, 1024, v{t0}")
            a(f"v_cvt_f32_u32 v{t0}, v{t0}")
            a(f"v_mul_f32 v{t0}, 0x{f2u(1/2048):08x}, v{t0}")
            a(f"v_mul_f32 v{t1}, v{t0}, v{t3}")
            for e in range(8):
                if ce[e] == 0: src = t1
                else:
                    a(f"v_fmamk_f32 v{ar+e}, v{t0}, 0x{f2u(float(ce[e])):08x}, v{t1}"); src = ar + e
                a(f"v_cos_f32 v{tc+e}, v{src}")
                a(f"v_sin_f32 v{ts+e}, v{src}")
            for h in range(4):
                a(f"v_cvt_pk_bf16_f32 v{base+4*kt+h}, v{tc+2*h}, v{tc+2*h+1}")
                a(f"v_cvt_pk_bf16_f32 v{base+8+4*kt+h}, v{ts+2*h}, v{ts+2*h+1}")
        for nt in range(2):
            a(f"v_add_u32 v{t0}, {16*nt}, v{self.vN}")
            a(f"v_mul_u32_u24 v{t1}, {ska}, v{t0}")
            a(f"v_cvt_f32_u32 v{t1}, v{t1}")
            a(f"v_mul_f32 v{t1}, 0x{f2u(1/2048):08x}, v{t1}")
            a(f"v_cvt_f32_u32 v{t0}, v{t0}")
            a(f"v_mul_f32 v{t0}, 0x{f2u(1/32):08x}, v{t0}")
            a(f"v_fma_f32 v{t1}, v{t0}, v{t3}, v{t1}")
            for e in range(8):
                if ce[e] == 0: src = t1
                else:
                    a(f"v_fmamk_f32 v{ar+e}, v{t0}, 0x{f2u(float(ce[e])):08x}, v{t1}"); src = ar + e
                a(f"v_cos_f32 v{tc+e}, v{src}")
                a(f"v_sin_f32 v{ts+e}, v{src}")
            for h in range(4):
                a(f"v_cvt_pk_bf16_f32 v{base+16+4*nt+h}, v{tc+2*h}, v{tc+2*h+1}")
                a(f"v_cvt_pk_bf16_f32 v{base+24+4*nt+h}, v{ts+2*h}, v{ts+2*h+1}")

    def w_read(self, W, lds, ska, seta):
        a = self.a; t0, t1, t2, t3 = self.t0, self.t1, self.t2, self.t3
        sW = 3
        a(f"v_and_b32 v{t0}, 1, v{self.vN}")
        a(f"v_lshlrev_b32 v{t0}, 12, v{t0}")
        a(f"v_lshl_add_u32 v{t0}, v{self.vG}, 8, v{t0}")
        a(f"v_xor_b32 v{t1}, s{sW}, v{self.vG}")
        a(f"v_lshl_add_u32 v{t0}, v{t1}, 4, v{t0}")
        a(f"v_lshrrev_b32 v{t1}, 1, v{self.vN}")
        a(f"v_lshl_add_u32 v{t0}, v{t1}, 1, v{t0}")
        a(f"v_add_u32 v{t0}, {lds}, v{t0}")
        for ty in range(2):
            for kt in range(2):
                for i in range(4):
                    a(f"ds_read_u16_d16_hi v{W+8*ty+4*kt+i}, v{t0} offset:{ty*2048 + kt*1024 + i*64}")
        lab = a.newlabel("A2fx")
        a(f"s_or_b32 s{self.sA}, s{self.sJ}, s{sW}")
        a(f"s_cmp_lg_u32 s{self.sA}, 0")
        a.fence()
        a(f"s_cbranch_scc1 {lab}")
        P = self.XF
        a(f"v_and_b32 v{t0}, 31, v{self.vL}")
        a(f"v_lshlrev_b32 v{t0}, 6, v{t0}")
        a(f"v_add_u32 v{t0}, {ska}, v{t0}")
        a(f"v_sub_u32 v{t1}, 2048, v{t0}")
        a(f"v_and_b32 v{t1}, 2047, v{t1}")
        a(f"v_lshrrev_b32 v{t2}, 5, v{self.vL}")
        a(f"v_lshlrev_b32 v{t2}, 9, v{t2}")
        a(f"v_mul_u32_u24 v{t0}, 514, v{t0}")
        a(f"v_add_u32 v{t0}, v{t0}, v{t2}")
        a(f"v_mul_u32_u24 v{t1}, 514, v{t1}")
        a(f"v_add_u32 v{t1}, v{t1}, v{t2}")
        a(f"buffer_load_short_d16_hi v{P}, v{t0}, {self.WR}, 0 offen")
        a(f"buffer_load_short_d16_hi v{P+1}, v{t1}, {self.WR}, 0 offen")
        a(f"buffer_load_short_d16_hi v{P+2}, v{t0}, {self.WI}, 0 offen")
        a(f"buffer_load_short_d16_hi v{P+3}, v{t1}, {self.WI}, 0 offen")
        a("s_waitcnt vmcnt(0)")
        a(f"v_fma_f32 v{P}, v{P+1}, {seta}, v{P}")
        a(f"v_fma_f32 v{P+2}, -v{P+3}, {seta}, v{P+2}")
        a(f"v_lshlrev_b32 v{t0}, 2, v{self.vL}")
        a(f"v_add_u32 v{t0}, {self.LF}, v{t0}")
        a(f"ds_write_b32 v{t0}, v{P}")
        a(f"ds_write_b32 v{t0}, v{P+2} offset:256")
        a(f"v_lshlrev_b32 v{t0}, 7, v{self.vN}")
        a(f"v_lshl_add_u32 v{t0}, v{self.vG}, 4, v{t0}")
        a(f"v_add_u32 v{t0}, {self.LF}, v{t0}")
        a("s_waitcnt lgkmcnt(0)")
        a("s_mov_b32 exec_lo, 0x00030003")
        a("s_mov_b32 exec_hi, 0x00030003")
        for ty in range(2):
            for kt in range(2):
                r = W + 8*ty + 4*kt
                a(f"ds_read_b128 v[{r}:{r+3}], v{t0} offset:{ty*256 + kt*64}")
        a("s_waitcnt lgkmcnt(0)")
        a("s_mov_b64 exec, -1")
        a.fence()
        a.label(lab)

    def pre_tables(self):
        a = self.a
        self.table()
        self.mmats(self.SET1, f"s{self.sQ}")
        a(f"s_cmp_lg_u32 s{self.sQ}, 0")
        a(f"s_cselect_b32 s{self.sKap}, 1.0, 0")
    def pre_w(self):
        a = self.a
        self.w_read(self.SET1 + 32, self.LW, f"s{self.sQ}", f"s{self.sKap}")
        lab = a.newlabel("A2s2")
        a(f"s_cmp_lg_u32 s{self.sQ}, 0")
        a.fence()
        a(f"s_cbranch_scc1 {lab}")
        a(f"s_mov_b32 s{self.sKA}, 32")
        self.mmats(self.SET2, f"s{self.sKA}")
        self.w_read(self.SET2 + 32, self.LW2, f"s{self.sKA}", "0")
        a.fence()
        a.label(lab)

    def u_dma(self):
        a = self.a; sW = 3
        for c in range(4):
            a(f"s_lshl_b32 s{self.sA}, s{sW}, 2")
            a(f"s_add_u32 s{self.sA}, s{self.sA}, {c}")
            a(f"v_xor_b32 v{self.vDm[c]}, s{self.sA}, v{self.vL}")
            a(f"v_lshlrev_b32 v{self.vDm[c]}, 4, v{self.vDm[c]}")
        a(f"s_lshl_b32 s{self.sA}, s{sW}, 12")
        a(f"s_lshl_b32 s{self.sB}, s{self.sQ}, 15")
        a(f"s_add_u32 s{self.sB}, s{self.sB}, s{self.sA}")
        if WS_U: a(f"s_add_u32 s{self.sB}, s{self.sB}, {WS_U}")
        if self.LU: a(f"s_add_u32 s{self.sA}, s{self.sA}, {self.LU}")
        out = []
        for mt in range(4):
            for c in range(4):
                goff = (mt & 1)*16384 + (mt >> 1)*32*32768 + c*1024
                s = f"s_add_u32 m0, s{self.sA}, {mt*16384 + c*1024}\n"
                s += f"s_add_u32 s{self.sC}, s{self.sB}, {goff}\n"
                s += f"buffer_load_dwordx4 v{self.vDm[c]}, s[12:15], s{self.sC} offen{self.ld_sc} lds"
                out.append(s)
        return out

    def frag_bases(self):
        a = self.a; t0 = self.t0
        for kk in range(4):
            a(f"v_add_u32 v{t0}, {4*kk}, v{self.vG}")
            a(f"v_xor_b32 v{t0}, v{t0}, v{self.vN}")
            a(f"v_lshlrev_b32 v{t0}, 4, v{t0}")
            a(f"v_lshl_add_u32 v{self.vX[kk]}, v{self.vN}, 10, v{t0}")
            if self.LU: a(f"v_add_u32 v{self.vX[kk]}, {self.LU}, v{self.vX[kk]}")
        a(f"v_lshlrev_b32 v{t0}, 4, v{self.vG}")
        a(f"v_lshl_add_u32 v{self.vS}, v{self.vN}, 16, v{t0}")

    def gemm(self, T, acc, reads, nrt=4):
        a = self.a
        for s in reads(0): a(s)
        for ks in range(16):
            st = ks & 1
            a("s_waitcnt lgkmcnt(0)")
            mf = []
            for mt in range(nrt):
                d = acc + 4*mt
                c = "0" if ks == 0 else f"v[{d}:{d+3}]"
                x = self.XF + 16*st + 4*mt
                mf.append(f"v_mfma_f32_16x16x32_bf16 v[{d}:{d+3}], v[{x}:{x+3}], v[{T+4*ks}:{T+4*ks+3}], {c}")
            sec = reads(ks + 1) if ks + 1 < 16 else []
            interleave(a, mf, sec, lead=len(sec))

    def gemm1(self):
        def reads(ks):
            st = ks & 1
            return [f"ds_read_b128 v[{self.XF+16*st+4*mt}:{self.XF+16*st+4*mt+3}], v{self.vX[ks&3]} offset:{mt*16384 + (ks>>2)*256}" for mt in range(4)]
        self.gemm(self.T, self.ACC, reads)

    def middle(self):
        a = self.a
        acc = self.ACC; X = self.XF
        Cf, Sf, Ci, Si = self.SET1, self.SET1 + 8, self.SET1 + 16, self.SET1 + 24
        Wr, Wi = self.SET1 + 32, self.SET1 + 40
        sW = 3
        loop = a.newlabel("A2loop"); notq0 = a.newlabel("A2nq0"); done = a.newlabel("A2done"); tail = a.newlabel("A2tail")
        a(f"s_mov_b32 s{self.sPass}, 0")
        a(f"s_cmp_lg_u32 s{self.sQ}, 0")
        a.fence()
        a(f"s_cbranch_scc1 {loop}")
        for i in range(8):
            a(f"v_mov_b32 v{self.SAVE+i}, v{acc+8+i}")
            a(f"v_mov_b32 v{acc+8+i}, 0")
        a.fence()
        a.label(loop)
        tt = X
        f1p, g2p, nf1p = X + 8, X + 12, X + 16
        for i in range(8):
            a(f"v_mov_b32 v{tt+i}, v{acc+8+i}")
        for i in range(8):
            a(f"v_fmac_f32_dpp v{tt+i}, v{acc+i}, v{self.vMu} quad_perm:[1,0,3,2] row_mask:0xf bank_mask:0xf")
        for i in range(8):
            a(f"v_fmac_f32_dpp v{acc+i}, v{acc+8+i}, v{self.vNMu} quad_perm:[1,0,3,2] row_mask:0xf bank_mask:0xf")
        for h in range(4):
            a(f"v_cvt_pk_bf16_f32 v{g2p+h}, -v{tt+2*h}, -v{tt+2*h+1}")
            a(f"v_cvt_pk_bf16_f32 v{f1p+h}, v{acc+2*h}, v{acc+2*h+1}")
            a(f"v_cvt_pk_bf16_f32 v{nf1p+h}, -v{acc+2*h}, -v{acc+2*h+1}")
        Xr, Xi = acc, acc + 8
        for kt in range(2):
            a(f"v_mfma_f32_16x16x32_bf16 v[{Xr+4*kt}:{Xr+4*kt+3}], v[{Cf+4*kt}:{Cf+4*kt+3}], v[{f1p}:{f1p+3}], 0")
            a(f"v_mfma_f32_16x16x32_bf16 v[{Xi+4*kt}:{Xi+4*kt+3}], v[{Cf+4*kt}:{Cf+4*kt+3}], v[{g2p}:{g2p+3}], 0")
        for kt in range(2):
            a(f"v_mfma_f32_16x16x32_bf16 v[{Xr+4*kt}:{Xr+4*kt+3}], v[{Sf+4*kt}:{Sf+4*kt+3}], v[{g2p}:{g2p+3}], v[{Xr+4*kt}:{Xr+4*kt+3}]")
            a(f"v_mfma_f32_16x16x32_bf16 v[{Xi+4*kt}:{Xi+4*kt+3}], v[{Sf+4*kt}:{Sf+4*kt+3}], v[{nf1p}:{nf1p+3}], v[{Xi+4*kt}:{Xi+4*kt+3}]")
        Yr, Yi = X, X + 8
        for h in range(4):
            o = 2*h
            a(f"v_pk_mul_f32 v[{Yr+o}:{Yr+o+1}], v[{Xr+o}:{Xr+o+1}], v[{Wr+o}:{Wr+o+1}]")
            a(f"v_pk_mul_f32 v[{Yi+o}:{Yi+o+1}], v[{Xr+o}:{Xr+o+1}], v[{Wi+o}:{Wi+o+1}]")
        for h in range(4):
            o = 2*h
            a(f"v_pk_fma_f32 v[{Yr+o}:{Yr+o+1}], v[{Xi+o}:{Xi+o+1}], v[{Wi+o}:{Wi+o+1}], v[{Yr+o}:{Yr+o+1}] neg_lo:[1,0,0] neg_hi:[1,0,0]")
            a(f"v_pk_fma_f32 v[{Yi+o}:{Yi+o+1}], v[{Xi+o}:{Xi+o+1}], v[{Wr+o}:{Wr+o+1}], v[{Yi+o}:{Yi+o+1}]")
        Yrp, Yip, nYip = X + 16, X + 20, X + 24
        for h in range(4):
            a(f"v_cvt_pk_bf16_f32 v{Yrp+h}, v{Yr+2*h}, v{Yr+2*h+1}")
            a(f"v_cvt_pk_bf16_f32 v{Yip+h}, v{Yi+2*h}, v{Yi+2*h+1}")
            a(f"v_cvt_pk_bf16_f32 v{nYip+h}, -v{Yi+2*h}, -v{Yi+2*h+1}")
        Zr, Zi = acc, acc + 8
        for nt in range(2):
            a(f"v_mfma_f32_16x16x32_bf16 v[{Zr+4*nt}:{Zr+4*nt+3}], v[{Yrp}:{Yrp+3}], v[{Ci+4*nt}:{Ci+4*nt+3}], 0")
            a(f"v_mfma_f32_16x16x32_bf16 v[{Zi+4*nt}:{Zi+4*nt+3}], v[{Yrp}:{Yrp+3}], v[{Si+4*nt}:{Si+4*nt+3}], 0")
        for nt in range(2):
            a(f"v_mfma_f32_16x16x32_bf16 v[{Zr+4*nt}:{Zr+4*nt+3}], v[{nYip}:{nYip+3}], v[{Si+4*nt}:{Si+4*nt+3}], v[{Zr+4*nt}:{Zr+4*nt+3}]")
            a(f"v_mfma_f32_16x16x32_bf16 v[{Zi+4*nt}:{Zi+4*nt+3}], v[{Yip}:{Yip+3}], v[{Ci+4*nt}:{Ci+4*nt+3}], v[{Zi+4*nt}:{Zi+4*nt+3}]")
        E, O = X, X + 8
        kap = f"s{self.sKap}"
        for nt in range(2):
            for jj in range(2):
                ar, ur = Zr + 4*nt + 2*jj, Zr + 4*nt + 2*jj + 1
                ai, ui = Zi + 4*nt + 2*jj, Zi + 4*nt + 2*jj + 1
                e = E + 4*nt + 2*jj; o = O + 4*nt + 2*jj
                a(f"v_fma_f32 v{e}, {kap}, v{ur}, v{ar}")
                a(f"v_fma_f32 v{e+1}, {kap}, v{ui}, -v{ai}")
                a(f"v_fma_f32 v{o}, {kap}, v{ui}, v{ai}")
                a(f"v_fma_f32 v{o+1}, -{kap}, v{ur}, v{ar}")
        lab = a.newlabel("A2j0")
        a(f"s_or_b32 s{self.sA}, s{self.sJ}, s{sW}")
        a(f"s_cmp_lg_u32 s{self.sA}, 0")
        a.fence()
        a(f"s_cbranch_scc1 {lab}")
        a("s_mov_b64 exec, 0xffff")
        for nt in range(2):
            a(f"v_mul_f32 v{E+4*nt}, 0.5, v{Zr+4*nt}")
            a(f"v_mul_f32 v{E+4*nt+1}, 0.5, v{Zr+4*nt+1}")
            a(f"v_mul_f32 v{O+4*nt}, 0.5, v{Zi+4*nt}")
            a(f"v_mul_f32 v{O+4*nt+1}, 0.5, v{Zi+4*nt+1}")
        a("s_mov_b64 exec, -1")
        a.fence()
        a.label(lab)
        P = X + 16
        for nt in range(2):
            for jj in range(2):
                a(f"v_cvt_pk_bf16_f32 v{P+4*nt+jj}, v{E+4*nt+2*jj}, v{E+4*nt+2*jj+1}")
                a(f"v_cvt_pk_bf16_f32 v{P+4*nt+2+jj}, v{O+4*nt+2*jj}, v{O+4*nt+2*jj+1}")
        a(f"s_cmp_lg_u32 s{self.sQ}, 0")
        a.fence()
        a(f"s_cbranch_scc1 {tail}")
        a(f"s_cmp_lg_u32 s{self.sPass}, 0")
        a(f"s_cbranch_scc1 {done}")
        a(f"s_mov_b32 s{self.sPass}, 1")
        SE = self.SAVE + 8
        for nt in range(2):
            for jj in range(2):
                a(f"v_mov_b32 v{SE+2*nt+jj}, v{P+4*nt+jj}")
        for i in range(8):
            a(f"v_mov_b32 v{acc+i}, v{self.SAVE+i}")
            a(f"v_mov_b32 v{acc+8+i}, 0")
        for i in range(48):
            a(f"v_mov_b32 v{self.SET1+i}, v{self.SET2+i}")
        a.fence()
        a(f"s_branch {loop}")
        a.label(done)
        for nt in range(2):
            for jj in range(2):
                a(f"v_mov_b32 v{P+4*nt+2+jj}, v{P+4*nt+jj}")
                a(f"v_mov_b32 v{P+4*nt+jj}, v{SE+2*nt+jj}")
        a.fence()
        a.label(tail)
        for nt in range(2):
            a(f"v_permlane16_swap_b32 v{P+4*nt}, v{P+4*nt+2}")
            a(f"v_permlane16_swap_b32 v{P+4*nt+1}, v{P+4*nt+3}")
        a(f"s_lshl_b32 s{self.sA}, s{self.sQ}, 11")
        a(f"s_lshl_b32 s{self.sB}, s{self.sJ}, 8")
        a(f"s_add_u32 s{self.sA}, s{self.sA}, s{self.sB}")
        a(f"s_lshl_b32 s{self.sB}, s{sW}, 6")
        a(f"s_add_u32 s{self.sA}, s{self.sA}, s{self.sB}")
        a(f"s_add_u32 s{self.sA}, s{self.sA}, {WS_ZO}")
        for nt in range(2):
            if nt: a(f"s_add_u32 s{self.sA}, s{self.sA}, {16*65536}")
            a(f"buffer_store_dwordx4 v[{P+4*nt}:{P+4*nt+3}], v{self.vS}, s[12:15], s{self.sA} offen{self.sc}")

def kernel_A2(name, prof=False, **kw):
    a = HAsm(); a.prof = prof
    a("s_cmp_ge_u32 s2, 256")
    a(f"s_cbranch_scc1 L_{name}_end")
    stamp(a, 0, real=True); stamp(a, 1)
    load_srd(a, 4, "wr"); load_srd(a, 8, "wi"); load_srd(a, 12, "ws")
    wave_id(a, 3, 1)
    a("s_waitcnt lgkmcnt(0)")
    fin_srd(a, 4, "wr"); fin_srd(a, 8, "wi"); fin_srd(a, 12, "ws", WS_SIZE)
    A = A2(a, **kw)
    A.decode()
    A.w_dma()
    A.pre_tables()
    stamp(a, 8)
    a("s_waitcnt vmcnt(0)")
    A.barrier(a)
    A.pre_w()
    stamp(a, 9)
    for s in A.u_dma(): a(s)
    A.frag_bases()
    stamp(a, 2)
    a("s_waitcnt vmcnt(0)")
    A.barrier(a)
    stamp(a, 3)
    A.gemm1()
    stamp(a, 4)
    A.middle()
    stamp(a, 5)
    if prof: a("s_waitcnt vmcnt(0)")
    stamp(a, 6); stamp(a, 7, real=True)
    dump_stamps(a, 10)
    a.fence()
    a.label(f"L_{name}_end")
    a("s_endpgm")
    return (name, a.text(), A2.NV, 0, 100), 65536 + 16384 + 512

if __name__ == "__main__":
    k, lds = kernel_A2(KNAME, prof=True)
    open(f"a2.s", "w").write(build_file([k], [(KNAME, 256, 256, lds)]))
    print("lds", lds, "vgprs", k[2], "lines", k[1].count("\n"))
```

```python
from common import *

GELU_C1 = -2.302208198144325
GELU_C2 = GELU_C1 * 0.044715
import struct
def f2u(x): return struct.unpack('<I', struct.pack('<f', x))[0]

def gen_B1(a, exp='', XB=0, WR=65536, R=4, ringstride=None, sc=" sc1", barrier=lambda a: a("s_barrier"), vb=0, after_issue=None, after_main=None, after_tile0=None):
    ringstride = ringstride or R * 3072
    V = lambda r: r + vb
    vL = 0
    vW = [V(1), V(2), V(3)]; vT = V(4); vX = [V(5), V(6), V(7), V(8)]
    t0, t1, t2, t3, t4, t5 = V(9), V(10), V(11), V(12), V(13), V(14)
    vG, vN = V(15), V(16)
    bias = V(20)
    xf = [V(32), V(48)]
    wf = [V(64), V(76)]
    acc = V(88)
    sRT, sCT, sT0, sVal, sA, sB, sC = 20, 21, 22, 23, 24, 25, 26
    sW = 3
    a(f"s_and_b32 s{sA}, s2, 7")
    a(f"s_lshr_b32 s{sB}, s2, 3")
    a(f"s_lshr_b32 s{sRT}, s{sA}, 1")
    a(f"s_lshl_b32 s{sRT}, s{sRT}, 3")
    a(f"s_and_b32 s{sC}, s{sB}, 7")
    a(f"s_add_u32 s{sRT}, s{sRT}, s{sC}")
    a(f"s_and_b32 s{sCT}, s{sA}, 1")
    a(f"s_lshl_b32 s{sCT}, s{sCT}, 2")
    a(f"s_lshr_b32 s{sC}, s{sB}, 3")
    a(f"s_add_u32 s{sCT}, s{sCT}, s{sC}")
    a(f"s_mul_i32 s{sT0}, s{sCT}, 11")
    a(f"s_max_u32 s{sC}, s{sCT}, 6")
    a(f"s_sub_u32 s{sC}, s{sC}, 6")
    a(f"s_sub_u32 s{sT0}, s{sT0}, s{sC}")
    a(f"s_cmp_lt_u32 s{sCT}, 6")
    a(f"s_cselect_b32 s{sVal}, 11, 10")
    a(f"s_mul_i32 s{sC}, s{sW}, 3")
    a(f"s_add_u32 s{sT0}, s{sT0}, s{sC}")
    a(f"s_sub_u32 s{sVal}, s{sVal}, s{sC}")
    a(f"s_min_u32 s{sVal}, s{sVal}, 3")
    lane_decomp(a, vL, vG, vN)
    a(f"v_lshlrev_b32 v{t0}, 3, v{vG}")
    a(f"s_lshl_b32 s{sA}, s{sT0}, 5")
    for j in range(3):
        a(f"buffer_load_dwordx2 v[{xf[1]+2*j}:{xf[1]+2*j+1}], v{t0}, s[16:19], s{sA} offen offset:{32*j}")
    for c in range(4):
        a(f"s_lshl_b32 s{sA}, s{sW}, 2")
        a(f"s_add_u32 s{sA}, s{sA}, {c}")
        a(f"v_xor_b32 v{t1+c}, s{sA}, v{vL}")
        a(f"v_lshlrev_b32 v{t1+c}, 4, v{t1+c}")
    a(f"s_lshl_b32 s{sA}, s{sW}, 2")
    a(f"s_lshl_b32 s{sB}, s{sA}, 15")
    a(f"s_lshl_b32 s{sC}, s{sRT}, 10")
    a(f"s_add_u32 s{sB}, s{sB}, s{sC}")
    a(f"s_lshl_b32 s{sA}, s{sA}, 10")
    a(f"s_add_u32 s{sA}, s{sA}, {XB}")
    for mt in range(4):
        for c in range(4):
            a(f"s_add_u32 m0, s{sA}, {mt*16384 + c*1024}")
            a(f"s_add_u32 s{sC}, s{sB}, {(mt*16 + c)*32768}")
            a(f"buffer_load_dwordx4 v{t1+c}, s[4:7], s{sC} offen lds")
    for i in range(3):
        a(f"v_add_u32 v{t0}, {64*i}, v{vL}")
        a(f"v_mul_u32_u24 v{t5}, 43691, v{t0}")
        a(f"v_lshrrev_b32 v{t5}, 18, v{t5}")
        a(f"v_mul_u32_u24 v{vW[i]}, 6, v{t5}")
        a(f"v_sub_u32 v{t0}, v{t0}, v{vW[i]}")
        a(f"v_and_b32 v{vW[i]}, 0x13, v{t5}")
        a(f"v_and_b32 v{vT}, 4, v{t5}")
        a(f"v_lshl_or_b32 v{vW[i]}, v{vT}, 1, v{vW[i]}")
        a(f"v_and_b32 v{vT}, 8, v{t5}")
        a(f"v_lshrrev_b32 v{vT}, 1, v{vT}")
        a(f"v_or_b32 v{vW[i]}, v{vW[i]}, v{vT}")
        a(f"v_mul_u32_u24 v{vW[i]}, 2752, v{vW[i]}")
        a(f"v_lshl_add_u32 v{vW[i]}, v{t0}, 4, v{vW[i]}")
        a(f"v_lshrrev_b32 v{t0}, 1, v{t0}")
        a(f"v_cmp_le_u32 vcc, s{sVal}, v{t0}")
        a(f"v_mov_b32 v{t5}, 0x7ff00000")
        a(f"v_cndmask_b32 v{vW[i]}, v{vW[i]}, v{t5}, vcc")
    sRing, sWO = 27, 28
    a(f"s_mul_i32 s{sRing}, s{sW}, {ringstride}")
    a(f"s_add_u32 s{sRing}, s{sRing}, {WR}")
    a(f"s_lshl_b32 s{sWO}, s{sT0}, 5")
    def wdma(ks):
        out = []
        slot = ks % R
        for i in range(3):
            s = ""
            if i == 0:
                s += f"s_add_u32 s{sC}, s{sWO}, {ks*32*2752}\n"
            s += f"s_add_u32 m0, s{sRing}, {slot*3072 + i*1024}\n"
            s += f"buffer_load_dwordx4 v{vW[i]}, s[8:11], s{sC} offen lds"
            out.append(s)
        return out
    for ks in range(R):
        for s in wdma(ks): a(s)
    if after_issue: after_issue(a)
    a(f"v_lshrrev_b32 v{t0}, 2, v{vN}")
    a(f"v_and_b32 v{t5}, 1, v{vG}")
    a(f"v_lshl_add_u32 v{t0}, v{t5}, 2, v{t0}")
    a(f"v_lshrrev_b32 v{t5}, 1, v{vG}")
    a(f"v_lshl_add_u32 v{t0}, v{t5}, 4, v{t0}")
    a(f"v_mul_u32_u24 v{t0}, 96, v{t0}")
    a(f"v_and_b32 v{t5}, 3, v{vN}")
    a(f"v_lshl_add_u32 v{t0}, v{t5}, 3, v{t0}")
    a(f"v_add_u32 v{vT}, s{sRing}, v{t0}")
    for kk in range(4):
        a(f"v_add_u32 v{t0}, {4*kk}, v{vG}")
        a(f"v_xor_b32 v{t0}, v{t0}, v{vN}")
        a(f"v_lshlrev_b32 v{t0}, 4, v{t0}")
        a(f"v_lshl_add_u32 v{vX[kk]}, v{vN}, 10, v{t0}")
        if XB: a(f"v_add_u32 v{vX[kk]}, {XB}, v{vX[kk]}")
    a(f"s_waitcnt vmcnt({16 + 3*R})")
    for j in range(3):
        for h in range(2):
            src = xf[1] + 2*j + h
            a(f"v_lshlrev_b32 v{bias + 4*j + 2*h}, 16, v{src}")
            a(f"v_and_b32 v{bias + 4*j + 2*h + 1}, 0xffff0000, v{src}")
    a(f"s_waitcnt vmcnt({3*R})")
    stamp(a, 2)
    barrier(a)
    stamp(a, 3)
    def reads(ks):
        st = ks & 1
        slot = ks % R
        out = []
        for j in range(3):
            for h in range(2):
                out.append(f"ds_read_b64_tr_b16 v[{wf[st]+4*j+2*h}:{wf[st]+4*j+2*h+1}], v{vT} offset:{slot*3072 + h*768 + j*32}")
        for mt in range(4):
            out.append(f"ds_read_b128 v[{xf[st]+4*mt}:{xf[st]+4*mt+3}], v{vX[ks&3]} offset:{mt*16384 + (ks>>2)*256}")
        return out
    a(f"s_waitcnt vmcnt({3*(R-1)})")
    for s in reads(0): a(s)
    for ks in range(16):
        st = ks & 1
        a("s_waitcnt lgkmcnt(0)")
        mf = []
        for mt in range(4):
            for j in range(3):
                d = acc + 4*(j*4 + mt)
                c = f"v[{bias+4*j}:{bias+4*j+3}]" if ks == 0 else f"v[{d}:{d+3}]"
                mf.append(f"v_mfma_f32_16x16x32_bf16 v[{d}:{d+3}], v[{wf[st]+4*j}:{wf[st]+4*j+3}], v[{xf[st]+4*mt}:{xf[st]+4*mt+3}], {c}")
        sec = []
        outstanding_after = min(16, ks + R + 1) - (ks + 2)
        if ks + R < 16 and 'nodma' not in exp:
            sec += wdma(ks + R)
        if ks + 1 < 16:
            left = min(15, ks + R) - (ks + 1)
            if 'nodma' not in exp: sec.append(f"s_waitcnt vmcnt({3*left})")
            if 'noread' not in exp: sec += reads(ks + 1)
        if 'nomfma' in exp: mf = mf[:1]
        interleave(a, mf, sec)
    if after_main: after_main(a)
    stamp(a, 4)
    cst = xf[0]
    a(f"v_mov_b32 v{cst}, 0x{f2u(GELU_C1):08x}")
    a(f"v_mov_b32 v{cst+1}, 0x{f2u(GELU_C2):08x}")
    a(f"v_mov_b32 v{cst+2}, 1.0")
    a(f"v_mov_b32 v{cst+3}, 1.0")
    a(f"v_and_b32 v{t0}, 1, v{vG}")
    a(f"v_lshlrev_b32 v{t0}, 9, v{t0}")
    a(f"v_lshrrev_b32 v{t5}, 1, v{vG}")
    a(f"v_lshl_add_u32 v{t0}, v{t5}, 8, v{t0}")
    a(f"v_lshl_add_u32 v{t0}, v{vN}, 4, v{t0}")
    a(f"s_mul_i32 s{sA}, s{sRT}, {H_P}")
    a(f"s_lshl_b32 s{sB}, s{sT0}, 11")
    a(f"s_add_u32 s{sA}, s{sA}, s{sB}")
    a(f"s_add_u32 s{sA}, s{sA}, {WS_H}")
    tmp = xf[0] + 4
    pk = xf[1]
    for j in range(3):
        lab = None
        if j > 0:
            lab = a.newlabel("B1skip")
            a.fence()
            a(f"s_cmp_le_u32 s{sVal}, {j}")
            a(f"s_cbranch_scc1 {lab}")
        o = pk + 8*(j & 1)
        for mt in range(4):
            d = acc + 4*(j*4 + mt)
            for h in range(2):
                x = d + 2*h; t = tmp + 2*((mt*2 + h) & 3)
                a(f"v_pk_mul_f32 v[{t}:{t+1}], v[{x}:{x+1}], v[{x}:{x+1}]")
                a(f"v_pk_fma_f32 v[{t}:{t+1}], v[{t}:{t+1}], v[{cst}:{cst+1}], v[{cst}:{cst+1}] op_sel:[0,1,0] op_sel_hi:[1,1,0]")
                a(f"v_pk_mul_f32 v[{t}:{t+1}], v[{t}:{t+1}], v[{x}:{x+1}]")
                a(f"v_exp_f32 v{t}, v{t}")
                a(f"v_exp_f32 v{t+1}, v{t+1}")
                a(f"v_pk_add_f32 v[{t}:{t+1}], v[{t}:{t+1}], v[{cst+2}:{cst+3}]")
                a(f"v_rcp_f32 v{t}, v{t}")
                a(f"v_rcp_f32 v{t+1}, v{t+1}")
                a(f"v_pk_mul_f32 v[{t}:{t+1}], v[{t}:{t+1}], v[{x}:{x+1}]")
                r = o + 4*(mt >> 1) + 2*(mt & 1) + h
                a(f"v_cvt_pk_bf16_f32 v{r}, v{t}, v{t+1}")
        for pair in range(2):
            b = o + 4*pair
            a(f"v_permlane16_swap_b32 v{b}, v{b+2}")
            a(f"v_permlane16_swap_b32 v{b+1}, v{b+3}")
            a(f"s_add_u32 s{sB}, s{sA}, {j*2048 + pair*1024}")
            a(f"buffer_store_dwordx4 v[{b}:{b+3}], v{t0}, s[12:15], s{sB} offen{sc}")
        if lab:
            a.fence()
            a.label(lab)
        if j == 0 and after_tile0: after_tile0(a)
    return V(136)

def kernel_B1(name, R=4, prof=False, exp=''):
    a = HAsm(); a.prof = prof
    stamp(a, 0, real=True); stamp(a, 1)
    a("s_cmp_ge_u32 s2, 256")
    a("s_cbranch_scc1 L_B1_end")
    load_srd(a, 4, "xA"); load_srd(a, 8, "w1"); load_srd(a, 12, "ws"); load_srd(a, 16, "b1")
    wave_id(a, 3, 1)
    a("s_waitcnt lgkmcnt(0)")
    fin_srd(a, 4, "xA"); fin_srd(a, 8, "w1"); fin_srd(a, 12, "ws", WS_SIZE); fin_srd(a, 16, "b1")
    nv = gen_B1(a, exp=exp, R=R)
    stamp(a, 5)
    if prof: a("s_waitcnt vmcnt(0)")
    stamp(a, 6); stamp(a, 7, real=True)
    dump_stamps(a, 8)
    a.fence()
    a.label("L_B1_end")
    a("s_endpgm")
    return (name, a.text(), nv, 0, 100), 65536 + 4*R*3072

if __name__ == "__main__":
    for R, e in ((4, 'nodma'), (4, 'noread'), (4, 'nodma_noread'), (4, 'nomfma'), (4, 'nomfma_noread')):
        k, lds = kernel_B1(KNAME, R=R, prof=True, exp=e)
        open(f"b1_{e}.s", "w").write(build_file([k], [(KNAME, 256, 256, lds)]))
        print("lds", lds, "lines", k[1].count("\n"))
```

```python
from common import *

LC = 159 * 1024
C_ABAR, C_BBAR, C_A1, C_B1, C_A2, C_BH, C_GO1, C_GO2, C_GOB, C_BT, C_NONCE = 0, 1, 2, 3, 4, 5, 6, 7, 8, 9, 13
vLC, vONE, vTMP, vNON = 252, 253, 254, 251
sLIM, sT, sOFF = 60, 61, 63
SPIN = 100000
NONCE_ADD = 0x9E3779B9
class FL:
    FS = 16
    F1 = WS_FL
    F2 = WS_FL + (16 << 10)
    FB = WS_FL + (32 << 10)
    FBS = 128
    NONCE = WS_FL + (48 << 10)

def init_regs(a):
    a(f"v_mov_b32 v{vLC}, {LC}")
    a(f"v_mov_b32 v{vONE}, 1")
    a(f"s_mov_b32 s{sLIM}, {SPIN}")

def zero_counters(a, t0, t1):
    a(f"v_lshlrev_b32 v{t0}, 2, v0")
    a(f"v_add_u32 v{t0}, {LC}, v{t0}")
    a(f"v_mov_b32 v{t1}, 0")
    a(f"ds_write_b32 v{t0}, v{t1}")
    a("s_waitcnt lgkmcnt(0)")

def timeout(a, code):
    a(f"s_mov_b32 s{sLIM}, 0")
    a(f"v_mov_b32 v{vTMP}, {0x100 + code}")
    a(f"v_mov_b32 v255, 0")
    a(f"buffer_store_dword v{vTMP}, v255, s[56:59], 0 offen offset:{4*(code & 15)}")

def arrive(a, c):
    a("s_mov_b64 exec, 1")
    a(f"ds_add_u32 v{vLC}, v{vONE} offset:{4*c}")
    a("s_mov_b64 exec, -1")

def wait(a, c, n, code):
    L = a.newlabel("W"); D = a.newlabel("Wd")
    a.fence()
    a.label(L)
    a(f"ds_read_b32 v{vTMP}, v{vLC} offset:{4*c}")
    a("s_waitcnt lgkmcnt(0)")
    a(f"v_readfirstlane_b32 s{sT}, v{vTMP}")
    a(f"s_cmp_ge_u32 s{sT}, {n}")
    a(f"s_cbranch_scc1 {D}")
    a(f"s_sub_u32 s{sLIM}, s{sLIM}, 1")
    a(f"s_cbranch_scc0 {L}")
    timeout(a, code)
    a.fence()
    a.label(D)

class TeamBarrier:
    def __init__(self, c, code):
        self.c = c; self.k = 0; self.code = code
    def __call__(self, a):
        self.k += 1
        arrive(a, self.c)
        wait(a, self.c, 4*self.k, self.code)

def publish(a, c, set_off):
    D = a.newlabel("P")
    a("s_waitcnt vmcnt(0)")
    a("s_mov_b64 exec, 1")
    a(f"ds_add_rtn_u32 v{vTMP}, v{vLC}, v{vONE} offset:{4*c}")
    a("s_waitcnt lgkmcnt(0)")
    a(f"v_readfirstlane_b32 s{sT}, v{vTMP}")
    a(f"s_cmp_lg_u32 s{sT}, 3")
    a(f"s_cbranch_scc1 {D}")
    set_off(a)
    a(f"v_mov_b32 v{vTMP}, 0")
    a(f"buffer_store_dword v{vNON}, v{vTMP}, s[12:15], s{sOFF} offen sc1")
    a.fence()
    a.label(D)
    a("s_mov_b64 exec, -1")

def flag256_off(base):
    def f(a):
        a(f"s_lshr_b32 s{sOFF}, s2, 2")
        a(f"s_mul_i32 s{sOFF}, s{sOFF}, {FL.FS}")
        a(f"s_and_b32 s{sT}, s2, 3")
        a(f"s_lshl_b32 s{sT}, s{sT}, 2")
        a(f"s_add_u32 s{sOFF}, s{sOFF}, s{sT}")
        a(f"s_add_u32 s{sOFF}, s{sOFF}, {base}")
    return f

def poll256(a, base, vD, vO, code):
    L = a.newlabel("Q"); D = a.newlabel("Qd")
    a(f"v_mul_u32_u24 v{vO}, {FL.FS}, v0")
    a(f"s_mov_b32 s{sOFF}, {base}")
    a.fence()
    a.label(L)
    a(f"buffer_load_dwordx4 v[{vD}:{vD+3}], v{vO}, s[12:15], s{sOFF} offen sc1")
    a("s_waitcnt vmcnt(0)")
    for i in range(4): a(f"v_xor_b32 v{vD+i}, v{vNON}, v{vD+i}")
    a(f"v_or3_b32 v{vD}, v{vD}, v{vD+1}, v{vD+2}")
    a(f"v_or_b32 v{vD}, v{vD}, v{vD+3}")
    a(f"v_cmp_ne_u32 vcc, 0, v{vD}")
    a(f"s_cmp_eq_u64 vcc, 0")
    a(f"s_cbranch_scc1 {D}")
    a(f"s_sub_u32 s{sLIM}, s{sLIM}, 1")
    a(f"s_cbranch_scc0 {L}")
    timeout(a, code)
    a.fence()
    a.label(D)

def poll8(a, sBase, vD, vO, code):
    L = a.newlabel("Q"); D = a.newlabel("Qd")
    a(f"v_lshlrev_b32 v{vO}, 2, v0")
    a("s_mov_b64 exec, 0xff")
    a.fence()
    a.label(L)
    a(f"buffer_load_dword v{vD}, v{vO}, s[12:15], s{sBase} offen sc1")
    a("s_waitcnt vmcnt(0)")
    a(f"v_cmp_ne_u32 vcc, v{vNON}, v{vD}")
    a(f"s_cmp_eq_u64 vcc, 0")
    a(f"s_cbranch_scc1 {D}")
    a(f"s_sub_u32 s{sLIM}, s{sLIM}, 1")
    a(f"s_cbranch_scc0 {L}")
    timeout(a, code)
    a.fence()
    a.label(D)
    a("s_mov_b64 exec, -1")
```

```python
import sys
from common import *
import sync as S
from a1 import gen_A1, f2u
from a2 import A2
from a3 import A3
from b1 import gen_B1

L_X = 0
L_W1 = 64 << 10
L_A1 = 112 << 10
L_W = 120 << 10
L_W2 = 128 << 10
L_F = 136 << 10
L_B2 = 64 << 10
L_BT = 128 << 10
LDS_SIZE = 160 << 10
sWG = 29

class B2M:
    sP, sT, sA, sB, sC, sH, sWO, sRing = 30, 31, 32, 33, 34, 35, 36, 37
    vD = [160, 161]
    e0, e1, e2 = 162, 163, 164
    vL, vG, vN = 0, 1, 2
    vT = [5, 6, 7, 8]; vH = 9
    t0, t1, t2 = 10, 11, 12
    wf = [16, 32]; hf = 48
    def __init__(self, a, LB=L_B2, R=5, HD=3, ld_sc=" sc1"):
        self.a = a; self.LB = LB; self.R = R; self.HD = HD; self.ld_sc = ld_sc
        self.acc = self.hf + 16*HD
        self.seq = []
    def decode(self):
        a = self.a
        a(f"s_and_b32 s{self.sP}, s2, 7")
        a(f"s_lshl_b32 s{self.sP}, s{self.sP}, 2")
        a(f"s_lshr_b32 s{self.sA}, s2, 3")
        a(f"s_lshr_b32 s{self.sT}, s{self.sA}, 2")
        a(f"s_and_b32 s{self.sA}, s{self.sA}, 3")
        a(f"s_add_u32 s{self.sP}, s{self.sP}, s{self.sA}")
    def early(self):
        a = self.a; sW = 3; t0, t1, t2 = self.e0, self.e1, self.e2
        self.decode()
        for par in range(2):
            a(f"v_lshrrev_b32 v{t0}, 3, v{self.vL}")
            a(f"v_bfe_u32 v{t1}, v{t0}, 1, 1")
            if par: a(f"v_or_b32 v{t1}, 2, v{t1}")
            a(f"v_bfe_u32 v{t2}, v{self.vL}, 1, 2")
            a(f"v_xor_b32 v{t1}, v{t1}, v{t2}")
            a(f"v_lshlrev_b32 v{t1}, 5, v{t1}")
            a(f"v_and_b32 v{t2}, 1, v{self.vL}")
            a(f"v_lshl_add_u32 v{t1}, v{t2}, 4, v{t1}")
            a(f"v_lshl_add_u32 v{self.vD[par]}, v{t0}, 10, v{t1}")
        a(f"s_mul_i32 s{self.sWO}, s{sW}, {11*32*1024}")
        a(f"s_lshl_b32 s{self.sA}, s{self.sT}, 7")
        a(f"s_add_u32 s{self.sWO}, s{self.sWO}, s{self.sA}")
        a(f"s_mul_i32 s{self.sRing}, s{sW}, {self.R*4096}")
        a(f"s_add_u32 s{self.sRing}, s{self.sRing}, {self.LB}")
    def wdma(self, ks):
        out = []
        slot = ks % self.R
        for i in range(4):
            s = f"s_add_u32 s{self.sC}, s{self.sWO}, {(ks*32 + 8*i)*1024}\n"
            s += f"s_add_u32 m0, s{self.sRing}, {slot*4096 + i*1024}\n"
            s += f"buffer_load_dwordx4 v{self.vD[i&1]}, s[40:43], s{self.sC} offen lds"
            out.append(s)
        return out
    def w_prefetch(self):
        for ks in range(self.R):
            for s in self.wdma(ks): self.a(s)
    def hload(self, ks):
        b = self.hf + 16*(ks % self.HD)
        out = []
        for nt in range(4):
            s = ""
            if nt == 0: s += f"s_add_u32 s{self.sB}, s{self.sH}, {ks*4096}\n"
            s += f"buffer_load_dwordx4 v[{b+4*nt}:{b+4*nt+3}], v{self.vH}, s[12:15], s{self.sB} offen offset:{nt*512}{self.ld_sc}"
            out.append(s)
        return out
    def setup(self):
        a = self.a; sW = 3; t0, t1, t2 = self.t0, self.t1, self.t2
        vG, vN = self.vG, self.vN
        lane_decomp(a, self.vL, vG, vN)
        a(f"v_lshrrev_b32 v{t0}, 1, v{vG}")
        a(f"v_lshlrev_b32 v{self.vH}, 11, v{t0}")
        a(f"v_and_b32 v{t0}, 1, v{vG}")
        a(f"v_lshl_add_u32 v{self.vH}, v{t0}, 8, v{self.vH}")
        a(f"v_lshl_add_u32 v{self.vH}, v{vN}, 4, v{self.vH}")
        a(f"s_mul_i32 s{self.sH}, s{self.sP}, {H_P}")
        a(f"s_mul_i32 s{self.sA}, s{sW}, {11*4096}")
        a(f"s_add_u32 s{self.sH}, s{self.sH}, s{self.sA}")
        a(f"s_add_u32 s{self.sH}, s{self.sH}, {WS_H}")
        a(f"v_lshrrev_b32 v{t0}, 2, v{vN}")
        a(f"v_lshl_add_u32 v{t1}, v{vG}, 3, v{t0}")
        a(f"v_lshlrev_b32 v{t1}, 7, v{t1}")
        a(f"v_lshrrev_b32 v{t0}, 1, v{t0}")
        a(f"v_and_b32 v{t2}, 1, v{vG}")
        a(f"v_lshl_add_u32 v{t0}, v{t2}, 1, v{t0}")
        a(f"v_lshl_add_u32 v{t1}, v{t0}, 5, v{t1}")
        a(f"v_and_b32 v{t0}, 3, v{vN}")
        a(f"v_lshl_add_u32 v{t1}, v{t0}, 3, v{t1}")
        for dt in range(4):
            a(f"v_xor_b32 v{self.vT[dt]}, {dt*32}, v{t1}")
            a(f"v_add_u32 v{self.vT[dt]}, s{self.sRing}, v{self.vT[dt]}")
    def main(self):
        a = self.a; sW = 3; R, HD = self.R, self.HD
        seq = self.seq; wf, hf, acc = self.wf, self.hf, self.acc
        NK = 11
        for ks in range(HD):
            for s in self.hload(ks): a(s); seq.append(('h', ks))
        def reads(ks):
            st = ks & 1; slot = ks % R
            return [f"ds_read_b64_tr_b16 v[{wf[st]+4*dt+2*h}:{wf[st]+4*dt+2*h+1}], v{self.vT[dt]} offset:{slot*4096 + h*512}" for dt in range(4) for h in range(2)]
        def wait_for(kind, ks):
            ids = [i for i, e in enumerate(seq) if e == (kind, ks)]
            if not ids: return None
            return f"s_waitcnt vmcnt({len(seq) - 1 - max(ids)})"
        for s in reads(0): a(s)
        for ks in range(NK):
            st = ks & 1
            a(wait_for('h', ks))
            a("s_waitcnt lgkmcnt(0)")
            if ks == NK - 1:
                lab = a.newlabel("B2z")
                a.fence()
                a(f"s_cmp_lg_u32 s{sW}, 3")
                a(f"s_cbranch_scc1 {lab}")
                b = hf + 16*(ks % HD)
                for r in range(16): a(f"v_mov_b32 v{b+r}, 0")
                a.fence()
                a.label(lab)
            mf = []
            b = hf + 16*(ks % HD)
            for dt in range(4):
                for nt in range(4):
                    d = acc + 4*(dt*4 + nt)
                    c = "0" if ks == 0 else f"v[{d}:{d+3}]"
                    mf.append(f"v_mfma_f32_16x16x32_bf16 v[{d}:{d+3}], v[{wf[st]+4*dt}:{wf[st]+4*dt+3}], v[{b+4*nt}:{b+4*nt+3}], {c}")
            w = self.wdma(ks + R) if ks + R < NK else []
            pre = []
            for s in w:
                pre.append(s); seq.append(('w', ks + R))
            if ks + 1 < NK:
                x = wait_for('w', ks + 1)
                if x: pre.append(x)
                pre += reads(ks + 1)
            post = []
            if ks + HD < NK:
                for s in self.hload(ks + HD):
                    post.append(s); seq.append(('h', ks + HD))
            interleave(a, mf, pre)
            for s in post: a(s)
    def reduce(self, barrier):
        a = self.a; acc = self.acc; sW = 3; LB = self.LB
        vA = 10; vB = 11; t0 = 12; res = 16
        barrier(a)
        a(f"v_lshlrev_b32 v{vA}, 4, v{self.vL}")
        a(f"s_lshl_b32 s{self.sA}, s{sW}, 14")
        a(f"s_add_u32 s{self.sA}, s{self.sA}, {LB}")
        a(f"v_add_u32 v{vB}, s{self.sA}, v{vA}")
        for tile in range(16):
            a(f"ds_write_b128 v{vB}, v[{acc+4*tile}:{acc+4*tile+3}] offset:{tile*1024}")
        a(f"s_lshl_b32 s{self.sA}, s{self.sT}, 7")
        a(f"s_lshl_b32 s{self.sB}, s{sW}, 5")
        a(f"s_add_u32 s{self.sA}, s{self.sA}, s{self.sB}")
        a(f"v_lshlrev_b32 v{t0}, 3, v{self.vG}")
        a(f"buffer_load_dwordx2 v[14:15], v{t0}, s[44:47], s{self.sA} offen")
        barrier(a)
        a(f"s_lshl_b32 s{self.sA}, s{sW}, 12")
        a(f"s_add_u32 s{self.sA}, s{self.sA}, {LB}")
        a(f"v_add_u32 v{vB}, s{self.sA}, v{vA}")
        for src in range(4):
            for nt in range(4):
                d = 48 + 16*src + 4*nt
                a(f"ds_read_b128 v[{d}:{d+3}], v{vB} offset:{src*16384 + nt*1024}")
        a("s_waitcnt vmcnt(0)")
        a("v_lshlrev_b32 v12, 16, v14\nv_and_b32 v13, 0xffff0000, v14\nv_lshlrev_b32 v14, 16, v15\nv_and_b32 v15, 0xffff0000, v15")
        a("s_waitcnt lgkmcnt(0)")
        for nt in range(4):
            for h in range(2):
                x = 48 + 4*nt + 2*h
                a(f"v_pk_add_f32 v[{x}:{x+1}], v[{x}:{x+1}], v[{x+16}:{x+17}]")
                a(f"v_pk_add_f32 v[{x+32}:{x+33}], v[{x+32}:{x+33}], v[{x+48}:{x+49}]")
                a(f"v_pk_add_f32 v[{x}:{x+1}], v[{x}:{x+1}], v[{x+32}:{x+33}]")
                a(f"v_pk_add_f32 v[{res+4*nt+2*h}:{res+4*nt+2*h+1}], v[{x}:{x+1}], v[{12+2*h}:{13+2*h}]")
        a(f"s_lshl_b32 s{self.sA}, s{sW}, 12")
        a(f"s_add_u32 s{self.sA}, s{self.sA}, {L_BT}")
        a(f"v_add_u32 v{vB}, s{self.sA}, v{vA}")
        for nt in range(4):
            a(f"ds_write_b128 v{vB}, v[{res+4*nt}:{res+4*nt+3}] offset:{nt*1024}")

def wave_counter_addr(a, v):
    a(f"s_lshl_b32 s{S.sT}, s3, 2")
    a(f"s_add_u32 s{S.sT}, s{S.sT}, {S.LC + 4*S.C_BT}")
    a(f"v_mov_b32 v{v}, s{S.sT}")

def A_path(a, stop=None):
    for sb, nm in ((4, "xA"), (8, "wi"), (12, "ws"), (16, "gw"), (44, "wr"), (48, "out"), (56, "dbg")): load_srd(a, sb, nm)
    S.init_regs(a)
    lab = a.newlabel("Z")
    a(f"s_cmp_lg_u32 s3, 0")
    a(f"s_cbranch_scc1 {lab}")
    S.zero_counters(a, 3, 4)
    a.fence(); a.label(lab)
    a("s_waitcnt lgkmcnt(0)")
    for sb, nm in ((4, "xA"), (8, "wi"), (16, "gw"), (44, "wr"), (48, "out"), (56, "dbg")): fin_srd(a, sb, nm)
    fin_srd(a, 12, "ws", WS_SIZE)
    bar = S.TeamBarrier(S.C_ABAR, 0)
    A = A2(a, LU=L_X, LW=L_W, LW2=L_W2, LF=L_F, barrier=bar, WR="s[44:47]", WI="s[8:11]", OUT="s[48:51]")
    def after_dma(a):
        A.w_dma()
        a(f"s_mov_b32 s{S.sOFF}, {S.FL.NONCE}")
        a(f"v_mov_b32 v{S.vTMP}, 0")
        a(f"buffer_load_dword v{S.vNON}, v{S.vTMP}, s[12:15], s{S.sOFF} offen sc1")
        a("s_barrier")
    def pre_wait(a):
        A.table()
    def bar1(a):
        a(f"v_add_u32 v{S.vNON}, 0x{S.NONCE_ADD:08x}, v{S.vNON}")
        lab = a.newlabel("N")
        a("s_cmp_lg_u32 s3, 0")
        a(f"s_cbranch_scc1 {lab}")
        a("s_mov_b64 exec, 1")
        a(f"ds_write_b32 v{S.vLC}, v{S.vNON} offset:{4*S.C_NONCE}")
        a("s_mov_b64 exec, -1")
        a.fence(); a.label(lab)
        bar(a)
    regs = dict(sA=30, sB=31, sC=32, vD=[224, 225], t=[3, 4, 5, 6], vT=[9, 10, 11, 12], vS=13, vXg=[238, 239], F=240, gwf=16, xf=128, acc=160, gx=24, gacc=176)
    gen_A1(a, LA=L_A1, barrier=bar1, after_dma=after_dma, regs=regs, pre_wait=pre_wait)
    stamp(a, 4)
    a(f"s_cmp_lg_u32 s{A.sQ}, 0")
    a(f"s_cselect_b32 s{A.sKap}, 1.0, 0")
    A.w_read(A.SET1 + 32, A.LW, f"s{A.sQ}", f"s{A.sKap}")
    lab = a.newlabel("A2s2")
    a(f"s_cmp_lg_u32 s{A.sQ}, 0")
    a.fence()
    a(f"s_cbranch_scc1 {lab}")
    a(f"s_mov_b32 s{A.sKA}, 32")
    A.w_read(A.SET2 + 32, A.LW2, f"s{A.sKA}", "0")
    a.fence(); a.label(lab)
    S.publish(a, S.C_A1, S.flag256_off(S.FL.F1))
    stamp(a, 5)
    A.mmats(A.SET1, f"s{A.sQ}")
    lab = a.newlabel("A2s3")
    a(f"s_cmp_lg_u32 s{A.sQ}, 0")
    a.fence()
    a(f"s_cbranch_scc1 {lab}")
    A.mmats(A.SET2, f"s{A.sKA}")
    a.fence(); a.label(lab)
    ud = A.u_dma()
    A.frag_bases()
    lab = a.newlabel("A2p")
    a.fence()
    a("s_cmp_lg_u32 s3, 0")
    a(f"s_cbranch_scc1 {lab}")
    S.poll256(a, S.FL.F1, 128, 132, 1)
    S.arrive(a, S.C_GO1)
    a.fence(); a.label(lab)
    S.wait(a, S.C_GO1, 1, 2)
    stamp(a, 6)
    S.wait(a, S.C_B1, 4, 3)
    stamp(a, 7)
    for s in ud: a(s)
    a("s_waitcnt vmcnt(0)")
    bar(a)
    stamp(a, 8)
    A.gemm1()
    A.middle()
    stamp(a, 9)
    B = A3(a, LU=L_X, barrier=bar, OUT="s[48:51]")
    B.gtable()
    S.publish(a, S.C_A2, S.flag256_off(S.FL.F2))
    stamp(a, 10)
    B.f3(); B.frag_bases()
    B.gate_load()
    zd = B.z_dma()
    wave_counter_addr(a, 250)
    lab = a.newlabel("A3p")
    a.fence()
    a("s_cmp_lg_u32 s3, 0")
    a(f"s_cbranch_scc1 {lab}")
    S.poll256(a, S.FL.F2, 128, 132, 4)
    S.arrive(a, S.C_GO2)
    lab2 = a.newlabel("A3n")
    a("s_cmp_lg_u32 s2, 0")
    a(f"s_cbranch_scc1 {lab2}")
    a(f"s_mov_b32 s{S.sOFF}, {S.FL.NONCE}")
    a(f"v_mov_b32 v{S.vTMP}, 0")
    a("s_mov_b64 exec, 1")
    a(f"buffer_store_dword v{S.vNON}, v{S.vTMP}, s[12:15], s{S.sOFF} offen sc1")
    a("s_mov_b64 exec, -1")
    a.fence(); a.label(lab2)
    a.fence(); a.label(lab)
    S.wait(a, S.C_GO2, 1, 5)
    stamp(a, 11)
    for s in zd: a(s)
    a("s_waitcnt vmcnt(0)")
    bar(a)
    stamp(a, 12)
    B.gate_calc()
    B.gemm3()
    B.second()
    stamp(a, 13)
    L = a.newlabel("BT"); D = a.newlabel("BTd")
    a.fence(); a.label(L)
    a(f"ds_read_b32 v{S.vTMP}, v250")
    a("s_waitcnt lgkmcnt(0)")
    a(f"v_readfirstlane_b32 s{S.sT}, v{S.vTMP}")
    a(f"s_cmp_ge_u32 s{S.sT}, 1")
    a(f"s_cbranch_scc1 {D}")
    a(f"s_sub_u32 s{S.sLIM}, s{S.sLIM}, 1")
    a(f"s_cbranch_scc0 {L}")
    S.timeout(a, 6)
    a.fence(); a.label(D)
    a(f"s_lshl_b32 s{B.sA}, s3, 12")
    a(f"s_add_u32 s{B.sA}, s{B.sA}, {L_BT}")
    a(f"v_lshlrev_b32 v{B.t0}, 4, v0")
    a(f"v_add_u32 v{B.t0}, s{B.sA}, v{B.t0}")
    for nt in range(4):
        a(f"ds_read_b128 v[{B.BT+4*nt}:{B.BT+4*nt+3}], v{B.t0} offset:{nt*1024}")
    a("s_waitcnt lgkmcnt(0)")
    stamp(a, 14)
    B.mix_store()

def B_path(a):
    for sb, nm in ((4, "xA"), (8, "w1"), (12, "ws"), (16, "b1"), (40, "w2"), (44, "b2"), (56, "dbg")): load_srd(a, sb, nm)
    S.init_regs(a)
    a("s_waitcnt lgkmcnt(0)")
    for sb, nm in ((4, "xA"), (8, "w1"), (16, "b1"), (40, "w2"), (44, "b2"), (56, "dbg")): fin_srd(a, sb, nm)
    fin_srd(a, 12, "ws", WS_SIZE)
    bar = S.TeamBarrier(S.C_BBAR, 8)
    B = B2M(a)
    def after_tile0(a):
        S.wait(a, S.C_B1, 4, 9)
        S.wait(a, S.C_A1, 4, 10)
        a(f"ds_read_b32 v{S.vNON}, v{S.vLC} offset:{4*S.C_NONCE}")
        B.early()
        B.w_prefetch()
        a("s_waitcnt lgkmcnt(0)")
    gen_B1(a, XB=L_X, WR=L_W1, R=4, barrier=bar, after_issue=lambda a: a("s_barrier"),
           after_main=lambda a: S.arrive(a, S.C_B1), after_tile0=after_tile0)
    stamp(a, 5)
    def fb_off(a):
        a(f"s_mul_i32 s{S.sOFF}, s20, {S.FL.FBS}")
        a(f"s_lshl_b32 s{S.sT}, s21, 2")
        a(f"s_add_u32 s{S.sOFF}, s{S.sOFF}, s{S.sT}")
        a(f"s_add_u32 s{S.sOFF}, s{S.sOFF}, {S.FL.FB}")
    S.publish(a, S.C_BH, fb_off)
    stamp(a, 6)
    B.setup()
    wave_counter_addr(a, 250)
    lab = a.newlabel("B2p")
    a.fence()
    a("s_cmp_lg_u32 s3, 0")
    a(f"s_cbranch_scc1 {lab}")
    a(f"s_mul_i32 s{S.sOFF}, s{B.sP}, {S.FL.FBS}")
    a(f"s_add_u32 s{S.sOFF}, s{S.sOFF}, {S.FL.FB}")
    S.poll8(a, S.sOFF, 165, 166, 11)
    S.arrive(a, S.C_GOB)
    a.fence(); a.label(lab)
    S.wait(a, S.C_GOB, 1, 12)
    stamp(a, 7)
    B.main()
    stamp(a, 8)
    B.reduce(bar)
    a("s_mov_b64 exec, 1")
    a(f"ds_add_u32 v250, v{S.vONE}")
    a("s_mov_b64 exec, -1")
    stamp(a, 9)

def build(prof=False):
    a = HAsm(); a.prof = prof
    a("s_cmp_ge_u32 s2, 256")
    a("s_cbranch_scc1 L_end")
    stamp(a, 0, real=True); stamp(a, 1)
    a(f"v_lshrrev_b32 v1, 6, v0")
    a(f"v_readfirstlane_b32 s{sWG}, v1")
    a(f"v_and_b32 v0, 63, v0")
    a(f"s_and_b32 s3, s{sWG}, 3")
    a(f"s_cmp_ge_u32 s{sWG}, 4")
    a("s_cbranch_scc1 L_B")
    A_path(a)
    a.fence()
    a("s_branch L_fin")
    a.label("L_B")
    B_path(a)
    a.fence()
    a.label("L_fin")
    if prof:
        a("s_waitcnt vmcnt(0)")
        stamp(a, 15, real=True)
        dump_stamps(a, 16, sw=sWG, nw=8)
    a.fence()
    a.label("L_end")
    a("s_endpgm")
    k = (KNAME, a.text(), 256, 0, 100)
    return build_file([k], [(KNAME, 256, 512, LDS_SIZE)])

if __name__ == "__main__":
    open("mega.s", "w").write(build())
    open("mega_prof.s", "w").write(build(prof=True))
    print("ok")
```

```python
import sys
from common import *
import sync as S
from a1 import gen_A1, f2u
from a2 import A2
from a3 import A3
from b1 import gen_B1

L_X = 0
L_W1 = 64 << 10
L_A1 = 112 << 10
L_W = 120 << 10
L_W2 = 128 << 10
L_F = 136 << 10
L_B2 = 64 << 10
L_BT = 128 << 10
LDS_SIZE = 160 << 10
sWG = 29

class B2M:
    sP, sT, sA, sB, sC, sH, sWO, sRing = 30, 31, 32, 33, 34, 35, 36, 37
    vD = [160, 161]
    e0, e1, e2 = 162, 163, 164
    vL, vG, vN = 0, 1, 2
    vT = [5, 6, 7, 8]; vH = 9
    t0, t1, t2 = 10, 11, 12
    wf = [16, 32]; hf = 48
    def __init__(self, a, LB=L_B2, R=5, HD=3, ld_sc=" sc1"):
        self.a = a; self.LB = LB; self.R = R; self.HD = HD; self.ld_sc = ld_sc
        self.acc = self.hf + 16*HD
        self.seq = []
    def decode(self):
        a = self.a
        a(f"s_and_b32 s{self.sP}, s2, 7")
        a(f"s_lshl_b32 s{self.sP}, s{self.sP}, 2")
        a(f"s_lshr_b32 s{self.sA}, s2, 3")
        a(f"s_lshr_b32 s{self.sT}, s{self.sA}, 2")
        a(f"s_and_b32 s{self.sA}, s{self.sA}, 3")
        a(f"s_add_u32 s{self.sP}, s{self.sP}, s{self.sA}")
    def early(self):
        a = self.a; sW = 3; t0, t1, t2 = self.e0, self.e1, self.e2
        self.decode()
        for par in range(2):
            a(f"v_lshrrev_b32 v{t0}, 3, v{self.vL}")
            a(f"v_bfe_u32 v{t1}, v{t0}, 1, 1")
            if par: a(f"v_or_b32 v{t1}, 2, v{t1}")
            a(f"v_bfe_u32 v{t2}, v{self.vL}, 1, 2")
            a(f"v_xor_b32 v{t1}, v{t1}, v{t2}")
            a(f"v_lshlrev_b32 v{t1}, 5, v{t1}")
            a(f"v_and_b32 v{t2}, 1, v{self.vL}")
            a(f"v_lshl_add_u32 v{t1}, v{t2}, 4, v{t1}")
            a(f"v_lshl_add_u32 v{self.vD[par]}, v{t0}, 10, v{t1}")
        a(f"s_mul_i32 s{self.sWO}, s{sW}, {11*32*1024}")
        a(f"s_lshl_b32 s{self.sA}, s{self.sT}, 7")
        a(f"s_add_u32 s{self.sWO}, s{self.sWO}, s{self.sA}")
        a(f"s_mul_i32 s{self.sRing}, s{sW}, {self.R*4096}")
        a(f"s_add_u32 s{self.sRing}, s{self.sRing}, {self.LB}")
    def wdma(self, ks):
        out = []
        slot = ks % self.R
        for i in range(4):
            s = f"s_add_u32 s{self.sC}, s{self.sWO}, {(ks*32 + 8*i)*1024}\n"
            s += f"s_add_u32 m0, s{self.sRing}, {slot*4096 + i*1024}\n"
            s += f"buffer_load_dwordx4 v{self.vD[i&1]}, s[40:43], s{self.sC} offen lds"
            out.append(s)
        return out
    def w_prefetch(self):
        for ks in range(self.R):
            for s in self.wdma(ks): self.a(s)
    def hload(self, ks):
        b = self.hf + 16*(ks % self.HD)
        out = []
        for nt in range(4):
            s = ""
            if nt == 0: s += f"s_add_u32 s{self.sB}, s{self.sH}, {ks*4096}\n"
            s += f"buffer_load_dwordx4 v[{b+4*nt}:{b+4*nt+3}], v{self.vH}, s[12:15], s{self.sB} offen offset:{nt*512}{self.ld_sc}"
            out.append(s)
        return out
    def setup(self):
        a = self.a; sW = 3; t0, t1, t2 = self.t0, self.t1, self.t2
        vG, vN = self.vG, self.vN
        lane_decomp(a, self.vL, vG, vN)
        a(f"v_lshrrev_b32 v{t0}, 1, v{vG}")
        a(f"v_lshlrev_b32 v{self.vH}, 11, v{t0}")
        a(f"v_and_b32 v{t0}, 1, v{vG}")
        a(f"v_lshl_add_u32 v{self.vH}, v{t0}, 8, v{self.vH}")
        a(f"v_lshl_add_u32 v{self.vH}, v{vN}, 4, v{self.vH}")
        a(f"s_mul_i32 s{self.sH}, s{self.sP}, {H_P}")
        a(f"s_mul_i32 s{self.sA}, s{sW}, {11*4096}")
        a(f"s_add_u32 s{self.sH}, s{self.sH}, s{self.sA}")
        a(f"s_add_u32 s{self.sH}, s{self.sH}, {WS_H}")
        a(f"v_lshrrev_b32 v{t0}, 2, v{vN}")
        a(f"v_lshl_add_u32 v{t1}, v{vG}, 3, v{t0}")
        a(f"v_lshlrev_b32 v{t1}, 7, v{t1}")
        a(f"v_lshrrev_b32 v{t0}, 1, v{t0}")
        a(f"v_and_b32 v{t2}, 1, v{vG}")
        a(f"v_lshl_add_u32 v{t0}, v{t2}, 1, v{t0}")
        a(f"v_lshl_add_u32 v{t1}, v{t0}, 5, v{t1}")
        a(f"v_and_b32 v{t0}, 3, v{vN}")
        a(f"v_lshl_add_u32 v{t1}, v{t0}, 3, v{t1}")
        for dt in range(4):
            a(f"v_xor_b32 v{self.vT[dt]}, {dt*32}, v{t1}")
            a(f"v_add_u32 v{self.vT[dt]}, s{self.sRing}, v{self.vT[dt]}")
    def main(self):
        a = self.a; sW = 3; R, HD = self.R, self.HD
        seq = self.seq; wf, hf, acc = self.wf, self.hf, self.acc
        NK = 11
        for ks in range(HD):
            for s in self.hload(ks): a(s); seq.append(('h', ks))
        def reads(ks):
            st = ks & 1; slot = ks % R
            return [f"ds_read_b64_tr_b16 v[{wf[st]+4*dt+2*h}:{wf[st]+4*dt+2*h+1}], v{self.vT[dt]} offset:{slot*4096 + h*512}" for dt in range(4) for h in range(2)]
        def wait_for(kind, ks):
            ids = [i for i, e in enumerate(seq) if e == (kind, ks)]
            if not ids: return None
            return f"s_waitcnt vmcnt({len(seq) - 1 - max(ids)})"
        for s in reads(0): a(s)
        for ks in range(NK):
            st = ks & 1
            a(wait_for('h', ks))
            a("s_waitcnt lgkmcnt(0)")
            if ks == NK - 1:
                lab = a.newlabel("B2z")
                a.fence()
                a(f"s_cmp_lg_u32 s{sW}, 3")
                a(f"s_cbranch_scc1 {lab}")
                b = hf + 16*(ks % HD)
                for r in range(16): a(f"v_mov_b32 v{b+r}, 0")
                a.fence()
                a.label(lab)
            mf = []
            b = hf + 16*(ks % HD)
            for dt in range(4):
                for nt in range(4):
                    d = acc + 4*(dt*4 + nt)
                    c = "0" if ks == 0 else f"v[{d}:{d+3}]"
                    mf.append(f"v_mfma_f32_16x16x32_bf16 v[{d}:{d+3}], v[{wf[st]+4*dt}:{wf[st]+4*dt+3}], v[{b+4*nt}:{b+4*nt+3}], {c}")
            w = self.wdma(ks + R) if ks + R < NK else []
            pre = []
            for s in w:
                pre.append(s); seq.append(('w', ks + R))
            if ks + 1 < NK:
                x = wait_for('w', ks + 1)
                if x: pre.append(x)
                pre += reads(ks + 1)
            post = []
            if ks + HD < NK:
                for s in self.hload(ks + HD):
                    post.append(s); seq.append(('h', ks + HD))
            interleave(a, mf, pre)
            for s in post: a(s)
    def reduce(self, barrier):
        a = self.a; acc = self.acc; sW = 3; LB = self.LB
        vA = 10; vB = 11; t0 = 12; res = 16
        barrier(a)
        a(f"v_lshlrev_b32 v{vA}, 4, v{self.vL}")
        a(f"s_lshl_b32 s{self.sA}, s{sW}, 14")
        a(f"s_add_u32 s{self.sA}, s{self.sA}, {LB}")
        a(f"v_add_u32 v{vB}, s{self.sA}, v{vA}")
        for tile in range(16):
            a(f"ds_write_b128 v{vB}, v[{acc+4*tile}:{acc+4*tile+3}] offset:{tile*1024}")
        a(f"s_lshl_b32 s{self.sA}, s{self.sT}, 7")
        a(f"s_lshl_b32 s{self.sB}, s{sW}, 5")
        a(f"s_add_u32 s{self.sA}, s{self.sA}, s{self.sB}")
        a(f"v_lshlrev_b32 v{t0}, 3, v{self.vG}")
        a(f"buffer_load_dwordx2 v[14:15], v{t0}, s[44:47], s{self.sA} offen")
        barrier(a)
        a(f"s_lshl_b32 s{self.sA}, s{sW}, 12")
        a(f"s_add_u32 s{self.sA}, s{self.sA}, {LB}")
        a(f"v_add_u32 v{vB}, s{self.sA}, v{vA}")
        for src in range(4):
            for nt in range(4):
                d = 48 + 16*src + 4*nt
                a(f"ds_read_b128 v[{d}:{d+3}], v{vB} offset:{src*16384 + nt*1024}")
        a("s_waitcnt vmcnt(0)")
        a("v_lshlrev_b32 v12, 16, v14\nv_and_b32 v13, 0xffff0000, v14\nv_lshlrev_b32 v14, 16, v15\nv_and_b32 v15, 0xffff0000, v15")
        a("s_waitcnt lgkmcnt(0)")
        for nt in range(4):
            for h in range(2):
                x = 48 + 4*nt + 2*h
                a(f"v_pk_add_f32 v[{x}:{x+1}], v[{x}:{x+1}], v[{x+16}:{x+17}]")
                a(f"v_pk_add_f32 v[{x+32}:{x+33}], v[{x+32}:{x+33}], v[{x+48}:{x+49}]")
                a(f"v_pk_add_f32 v[{x}:{x+1}], v[{x}:{x+1}], v[{x+32}:{x+33}]")
                a(f"v_pk_add_f32 v[{res+4*nt+2*h}:{res+4*nt+2*h+1}], v[{x}:{x+1}], v[{12+2*h}:{13+2*h}]")
        a(f"s_lshl_b32 s{self.sA}, s{sW}, 12")
        a(f"s_add_u32 s{self.sA}, s{self.sA}, {L_BT}")
        a(f"v_add_u32 v{vB}, s{self.sA}, v{vA}")
        for nt in range(4):
            a(f"ds_write_b128 v{vB}, v[{res+4*nt}:{res+4*nt+3}] offset:{nt*1024}")

def wave_counter_addr(a, v):
    a(f"s_lshl_b32 s{S.sT}, s3, 2")
    a(f"s_add_u32 s{S.sT}, s{S.sT}, {S.LC + 4*S.C_BT}")
    a(f"v_mov_b32 v{v}, s{S.sT}")

def A_path(a, stop=None):
    for sb, nm in ((4, "xA"), (8, "wi"), (12, "ws"), (16, "gw"), (44, "wr"), (48, "out"), (56, "dbg")): load_srd(a, sb, nm)
    S.init_regs(a)
    lab = a.newlabel("Z")
    a(f"s_cmp_lg_u32 s3, 0")
    a(f"s_cbranch_scc1 {lab}")
    S.zero_counters(a, 3, 4)
    a.fence(); a.label(lab)
    a("s_waitcnt lgkmcnt(0)")
    for sb, nm in ((4, "xA"), (8, "wi"), (16, "gw"), (44, "wr"), (48, "out"), (56, "dbg")): fin_srd(a, sb, nm)
    fin_srd(a, 12, "ws", WS_SIZE)
    bar = S.TeamBarrier(S.C_ABAR, 0)
    A = A2(a, LU=L_X, LW=L_W, LW2=L_W2, LF=L_F, barrier=bar, WR="s[44:47]", WI="s[8:11]", OUT="s[48:51]")
    def after_dma(a):
        A.w_dma()
        a(f"s_mov_b32 s{S.sOFF}, {S.FL.NONCE}")
        a(f"v_mov_b32 v{S.vTMP}, 0")
        a(f"buffer_load_dword v{S.vNON}, v{S.vTMP}, s[12:15], s{S.sOFF} offen sc1")
        a("s_barrier")
    def pre_wait(a):
        A.table()
    def bar1(a):
        a(f"v_add_u32 v{S.vNON}, 0x{S.NONCE_ADD:08x}, v{S.vNON}")
        lab = a.newlabel("N")
        a("s_cmp_lg_u32 s3, 0")
        a(f"s_cbranch_scc1 {lab}")
        a("s_mov_b64 exec, 1")
        a(f"ds_write_b32 v{S.vLC}, v{S.vNON} offset:{4*S.C_NONCE}")
        a("s_mov_b64 exec, -1")
        a.fence(); a.label(lab)
        bar(a)
    regs = dict(sA=30, sB=31, sC=32, vD=[224, 225], t=[3, 4, 5, 6], vT=[9, 10, 11, 12], vS=13, vXg=[238, 239], F=240, gwf=16, xf=128, acc=160, gx=24, gacc=176)
    gen_A1(a, LA=L_A1, barrier=bar1, after_dma=after_dma, regs=regs, pre_wait=pre_wait)
    stamp(a, 4)
    a(f"s_cmp_lg_u32 s{A.sQ}, 0")
    a(f"s_cselect_b32 s{A.sKap}, 1.0, 0")
    A.w_read(A.SET1 + 32, A.LW, f"s{A.sQ}", f"s{A.sKap}")
    lab = a.newlabel("A2s2")
    a(f"s_cmp_lg_u32 s{A.sQ}, 0")
    a.fence()
    a(f"s_cbranch_scc1 {lab}")
    a(f"s_mov_b32 s{A.sKA}, 32")
    A.w_read(A.SET2 + 32, A.LW2, f"s{A.sKA}", "0")
    a.fence(); a.label(lab)
    S.publish(a, S.C_A1, S.flag256_off(S.FL.F1))
    stamp(a, 5)
    A.mmats(A.SET1, f"s{A.sQ}")
    lab = a.newlabel("A2s3")
    a(f"s_cmp_lg_u32 s{A.sQ}, 0")
    a.fence()
    a(f"s_cbranch_scc1 {lab}")
    A.mmats(A.SET2, f"s{A.sKA}")
    a.fence(); a.label(lab)
    ud = A.u_dma()
    A.frag_bases()
    lab = a.newlabel("A2p")
    a.fence()
    a("s_cmp_lg_u32 s3, 0")
    a(f"s_cbranch_scc1 {lab}")
    S.poll256(a, S.FL.F1, 128, 132, 1)
    S.arrive(a, S.C_GO1)
    a.fence(); a.label(lab)
    S.wait(a, S.C_GO1, 1, 2)
    stamp(a, 6)
    S.wait(a, S.C_B1, 4, 3)
    stamp(a, 7)
    for s in ud: a(s)
    a("s_waitcnt vmcnt(0)")
    bar(a)
    stamp(a, 8)
    A.gemm1()
    A.middle()
    stamp(a, 9)
    B = A3(a, LU=L_X, barrier=bar, OUT="s[48:51]")
    B.gtable()
    S.publish(a, S.C_A2, S.flag256_off(S.FL.F2))
    stamp(a, 10)
    B.f3(); B.frag_bases()
    B.gate_load()
    zd = B.z_dma()
    wave_counter_addr(a, 250)
    lab = a.newlabel("A3p")
    a.fence()
    a("s_cmp_lg_u32 s3, 0")
    a(f"s_cbranch_scc1 {lab}")
    S.poll256(a, S.FL.F2, 128, 132, 4)
    S.arrive(a, S.C_GO2)
    lab2 = a.newlabel("A3n")
    a("s_cmp_lg_u32 s2, 0")
    a(f"s_cbranch_scc1 {lab2}")
    a(f"s_mov_b32 s{S.sOFF}, {S.FL.NONCE}")
    a(f"v_mov_b32 v{S.vTMP}, 0")
    a("s_mov_b64 exec, 1")
    a(f"buffer_store_dword v{S.vNON}, v{S.vTMP}, s[12:15], s{S.sOFF} offen sc1")
    a("s_mov_b64 exec, -1")
    a.fence(); a.label(lab2)
    a.fence(); a.label(lab)
    S.wait(a, S.C_GO2, 1, 5)
    stamp(a, 11)
    for s in zd: a(s)
    a("s_waitcnt vmcnt(0)")
    bar(a)
    stamp(a, 12)
    B.gate_calc()
    B.gemm3()
    B.second()
    stamp(a, 13)
    L = a.newlabel("BT"); D = a.newlabel("BTd")
    a.fence(); a.label(L)
    a(f"ds_read_b32 v{S.vTMP}, v250")
    a("s_waitcnt lgkmcnt(0)")
    a(f"v_readfirstlane_b32 s{S.sT}, v{S.vTMP}")
    a(f"s_cmp_ge_u32 s{S.sT}, 1")
    a(f"s_cbranch_scc1 {D}")
    a(f"s_sub_u32 s{S.sLIM}, s{S.sLIM}, 1")
    a(f"s_cbranch_scc0 {L}")
    S.timeout(a, 6)
    a.fence(); a.label(D)
    a(f"s_lshl_b32 s{B.sA}, s3, 12")
    a(f"s_add_u32 s{B.sA}, s{B.sA}, {L_BT}")
    a(f"v_lshlrev_b32 v{B.t0}, 4, v0")
    a(f"v_add_u32 v{B.t0}, s{B.sA}, v{B.t0}")
    for nt in range(4):
        a(f"ds_read_b128 v[{B.BT+4*nt}:{B.BT+4*nt+3}], v{B.t0} offset:{nt*1024}")
    a("s_waitcnt lgkmcnt(0)")
    stamp(a, 14)
    B.mix_store()

def B_path(a):
    for sb, nm in ((4, "xA"), (8, "w1"), (12, "ws"), (16, "b1"), (40, "w2"), (44, "b2"), (56, "dbg")): load_srd(a, sb, nm)
    S.init_regs(a)
    a("s_waitcnt lgkmcnt(0)")
    for sb, nm in ((4, "xA"), (8, "w1"), (16, "b1"), (40, "w2"), (44, "b2"), (56, "dbg")): fin_srd(a, sb, nm)
    fin_srd(a, 12, "ws", WS_SIZE)
    bar = S.TeamBarrier(S.C_BBAR, 8)
    B = B2M(a)
    def after_tile0(a):
        S.wait(a, S.C_B1, 4, 9)
        S.wait(a, S.C_A1, 4, 10)
        a(f"ds_read_b32 v{S.vNON}, v{S.vLC} offset:{4*S.C_NONCE}")
        B.early()
        B.w_prefetch()
        a("s_waitcnt lgkmcnt(0)")
    gen_B1(a, XB=L_X, WR=L_W1, R=4, barrier=bar, after_issue=lambda a: a("s_barrier"),
           after_main=lambda a: S.arrive(a, S.C_B1), after_tile0=after_tile0)
    stamp(a, 5)
    def fb_off(a):
        a(f"s_mul_i32 s{S.sOFF}, s20, {S.FL.FBS}")
        a(f"s_lshl_b32 s{S.sT}, s21, 2")
        a(f"s_add_u32 s{S.sOFF}, s{S.sOFF}, s{S.sT}")
        a(f"s_add_u32 s{S.sOFF}, s{S.sOFF}, {S.FL.FB}")
    S.publish(a, S.C_BH, fb_off)
    stamp(a, 6)
    B.setup()
    wave_counter_addr(a, 250)
    lab = a.newlabel("B2p")
    a.fence()
    a("s_cmp_lg_u32 s3, 0")
    a(f"s_cbranch_scc1 {lab}")
    a(f"s_mul_i32 s{S.sOFF}, s{B.sP}, {S.FL.FBS}")
    a(f"s_add_u32 s{S.sOFF}, s{S.sOFF}, {S.FL.FB}")
    S.poll8(a, S.sOFF, 165, 166, 11)
    S.arrive(a, S.C_GOB)
    a.fence(); a.label(lab)
    S.wait(a, S.C_GOB, 1, 12)
    stamp(a, 7)
    B.main()
    stamp(a, 8)
    B.reduce(bar)
    a("s_mov_b64 exec, 1")
    a(f"ds_add_u32 v250, v{S.vONE}")
    a("s_mov_b64 exec, -1")
    stamp(a, 9)

def dbg_time(a, slot, inv):
    a("s_load_dwordx2 s[56:57], s[0:1], 80")
    a("s_memrealtime s[62:63]")
    a("s_waitcnt lgkmcnt(0)")
    a("s_and_b32 s57, s57, 0xffff\ns_mov_b32 s58, 256\ns_mov_b32 s59, 0x20000")
    if inv: a("s_not_b32 s62, s62")
    a("v_mov_b32 v254, s62\nv_mov_b32 v255, 0")
    a("s_mov_b64 exec, 1")
    a(f"buffer_atomic_umax v254, v255, s[56:59], 0 offen offset:{4*slot}")
    a("s_mov_b64 exec, -1")

def build(prof=False, dbgtime=False):
    a = HAsm(); a.prof = prof
    a("s_cmp_ge_u32 s2, 256")
    a("s_cbranch_scc1 L_end")
    if dbgtime: dbg_time(a, 14, True)
    stamp(a, 0, real=True); stamp(a, 1)
    a(f"v_lshrrev_b32 v1, 6, v0")
    a(f"v_readfirstlane_b32 s{sWG}, v1")
    a(f"v_and_b32 v0, 63, v0")
    a(f"s_and_b32 s3, s{sWG}, 3")
    a(f"s_cmp_ge_u32 s{sWG}, 4")
    a("s_cbranch_scc1 L_B")
    A_path(a)
    a.fence()
    a("s_branch L_fin")
    a.label("L_B")
    B_path(a)
    a.fence()
    a.label("L_fin")
    if dbgtime:
        a("s_waitcnt vmcnt(0)")
        dbg_time(a, 15, False)
    if prof:
        a("s_waitcnt vmcnt(0)")
        stamp(a, 15, real=True)
        dump_stamps(a, 16, sw=sWG, nw=8)
    a.fence()
    a.label("L_end")
    a("s_endpgm")
    k = (KNAME, a.text(), 256, 0, 100)
    return build_file([k], [(KNAME, 256, 512, LDS_SIZE)])

if __name__ == "__main__":
    open("mega.s", "w").write(build())
    open("mega_prof.s", "w").write(build(prof=True))
    open("mega_dt.s", "w").write(build(dbgtime=True))
    print("ok")
```

```python
import sys
from common import *
import sync as S
from a1 import gen_A1, f2u
from a2 import A2
from a3 import A3
from b1 import gen_B1

L_X = 0
L_W1 = 64 << 10
L_A1 = 112 << 10
L_W = 120 << 10
L_W2 = 128 << 10
L_F = 136 << 10
L_B2 = 64 << 10
L_BT = 128 << 10
LDS_SIZE = 160 << 10
sWG = 29

class B2M:
    sP, sT, sA, sB, sC, sH, sWO, sRing = 30, 31, 32, 33, 34, 35, 36, 37
    vD = [160, 161]
    e0, e1, e2 = 162, 163, 164
    vL, vG, vN = 0, 1, 2
    vT = [5, 6, 7, 8]; vH = 9
    t0, t1, t2 = 10, 11, 12
    wf = [16, 32]; hf = 48
    def __init__(self, a, LB=L_B2, R=5, HD=3, ld_sc=" sc1"):
        self.a = a; self.LB = LB; self.R = R; self.HD = HD; self.ld_sc = ld_sc
        self.acc = self.hf + 16*HD
        self.seq = []
    def decode(self):
        a = self.a
        a(f"s_and_b32 s{self.sP}, s2, 7")
        a(f"s_lshl_b32 s{self.sP}, s{self.sP}, 2")
        a(f"s_lshr_b32 s{self.sA}, s2, 3")
        a(f"s_lshr_b32 s{self.sT}, s{self.sA}, 2")
        a(f"s_and_b32 s{self.sA}, s{self.sA}, 3")
        a(f"s_add_u32 s{self.sP}, s{self.sP}, s{self.sA}")
    def early(self):
        a = self.a; sW = 3; t0, t1, t2 = self.e0, self.e1, self.e2
        self.decode()
        for par in range(2):
            a(f"v_lshrrev_b32 v{t0}, 3, v{self.vL}")
            a(f"v_bfe_u32 v{t1}, v{t0}, 1, 1")
            if par: a(f"v_or_b32 v{t1}, 2, v{t1}")
            a(f"v_bfe_u32 v{t2}, v{self.vL}, 1, 2")
            a(f"v_xor_b32 v{t1}, v{t1}, v{t2}")
            a(f"v_lshlrev_b32 v{t1}, 5, v{t1}")
            a(f"v_and_b32 v{t2}, 1, v{self.vL}")
            a(f"v_lshl_add_u32 v{t1}, v{t2}, 4, v{t1}")
            a(f"v_lshl_add_u32 v{self.vD[par]}, v{t0}, 10, v{t1}")
        a(f"s_mul_i32 s{self.sWO}, s{sW}, {11*32*1024}")
        a(f"s_lshl_b32 s{self.sA}, s{self.sT}, 7")
        a(f"s_add_u32 s{self.sWO}, s{self.sWO}, s{self.sA}")
        a(f"s_mul_i32 s{self.sRing}, s{sW}, {self.R*4096}")
        a(f"s_add_u32 s{self.sRing}, s{self.sRing}, {self.LB}")
    def wdma(self, ks):
        out = []
        slot = ks % self.R
        for i in range(4):
            s = f"s_add_u32 s{self.sC}, s{self.sWO}, {(ks*32 + 8*i)*1024}\n"
            s += f"s_add_u32 m0, s{self.sRing}, {slot*4096 + i*1024}\n"
            s += f"buffer_load_dwordx4 v{self.vD[i&1]}, s[40:43], s{self.sC} offen lds"
            out.append(s)
        return out
    def w_prefetch(self):
        for ks in range(self.R):
            for s in self.wdma(ks): self.a(s)
    def hload(self, ks):
        b = self.hf + 16*(ks % self.HD)
        out = []
        for nt in range(4):
            s = ""
            if nt == 0: s += f"s_add_u32 s{self.sB}, s{self.sH}, {ks*4096}\n"
            s += f"buffer_load_dwordx4 v[{b+4*nt}:{b+4*nt+3}], v{self.vH}, s[12:15], s{self.sB} offen offset:{nt*512}{self.ld_sc}"
            out.append(s)
        return out
    def setup(self):
        a = self.a; sW = 3; t0, t1, t2 = self.t0, self.t1, self.t2
        vG, vN = self.vG, self.vN
        lane_decomp(a, self.vL, vG, vN)
        a(f"v_lshrrev_b32 v{t0}, 1, v{vG}")
        a(f"v_lshlrev_b32 v{self.vH}, 11, v{t0}")
        a(f"v_and_b32 v{t0}, 1, v{vG}")
        a(f"v_lshl_add_u32 v{self.vH}, v{t0}, 8, v{self.vH}")
        a(f"v_lshl_add_u32 v{self.vH}, v{vN}, 4, v{self.vH}")
        a(f"s_mul_i32 s{self.sH}, s{self.sP}, {H_P}")
        a(f"s_mul_i32 s{self.sA}, s{sW}, {11*4096}")
        a(f"s_add_u32 s{self.sH}, s{self.sH}, s{self.sA}")
        a(f"s_add_u32 s{self.sH}, s{self.sH}, {WS_H}")
        a(f"v_lshrrev_b32 v{t0}, 2, v{vN}")
        a(f"v_lshl_add_u32 v{t1}, v{vG}, 3, v{t0}")
        a(f"v_lshlrev_b32 v{t1}, 7, v{t1}")
        a(f"v_lshrrev_b32 v{t0}, 1, v{t0}")
        a(f"v_and_b32 v{t2}, 1, v{vG}")
        a(f"v_lshl_add_u32 v{t0}, v{t2}, 1, v{t0}")
        a(f"v_lshl_add_u32 v{t1}, v{t0}, 5, v{t1}")
        a(f"v_and_b32 v{t0}, 3, v{vN}")
        a(f"v_lshl_add_u32 v{t1}, v{t0}, 3, v{t1}")
        for dt in range(4):
            a(f"v_xor_b32 v{self.vT[dt]}, {dt*32}, v{t1}")
            a(f"v_add_u32 v{self.vT[dt]}, s{self.sRing}, v{self.vT[dt]}")
    def main(self):
        a = self.a; sW = 3; R, HD = self.R, self.HD
        seq = self.seq; wf, hf, acc = self.wf, self.hf, self.acc
        NK = 11
        for ks in range(HD):
            for s in self.hload(ks): a(s); seq.append(('h', ks))
        def reads(ks):
            st = ks & 1; slot = ks % R
            return [f"ds_read_b64_tr_b16 v[{wf[st]+4*dt+2*h}:{wf[st]+4*dt+2*h+1}], v{self.vT[dt]} offset:{slot*4096 + h*512}" for dt in range(4) for h in range(2)]
        def wait_for(kind, ks):
            ids = [i for i, e in enumerate(seq) if e == (kind, ks)]
            if not ids: return None
            return f"s_waitcnt vmcnt({len(seq) - 1 - max(ids)})"
        for s in reads(0): a(s)
        for ks in range(NK):
            st = ks & 1
            a(wait_for('h', ks))
            a("s_waitcnt lgkmcnt(0)")
            if ks == NK - 1:
                lab = a.newlabel("B2z")
                a.fence()
                a(f"s_cmp_lg_u32 s{sW}, 3")
                a(f"s_cbranch_scc1 {lab}")
                b = hf + 16*(ks % HD)
                for r in range(16): a(f"v_mov_b32 v{b+r}, 0")
                a.fence()
                a.label(lab)
            mf = []
            b = hf + 16*(ks % HD)
            for dt in range(4):
                for nt in range(4):
                    d = acc + 4*(dt*4 + nt)
                    c = "0" if ks == 0 else f"v[{d}:{d+3}]"
                    mf.append(f"v_mfma_f32_16x16x32_bf16 v[{d}:{d+3}], v[{wf[st]+4*dt}:{wf[st]+4*dt+3}], v[{b+4*nt}:{b+4*nt+3}], {c}")
            w = self.wdma(ks + R) if ks + R < NK else []
            pre = []
            for s in w:
                pre.append(s); seq.append(('w', ks + R))
            if ks + 1 < NK:
                x = wait_for('w', ks + 1)
                if x: pre.append(x)
                pre += reads(ks + 1)
            post = []
            if ks + HD < NK:
                for s in self.hload(ks + HD):
                    post.append(s); seq.append(('h', ks + HD))
            interleave(a, mf, pre)
            for s in post: a(s)
    def reduce(self, barrier):
        a = self.a; acc = self.acc; sW = 3; LB = self.LB
        vA = 10; vB = 11; t0 = 12; res = 16
        barrier(a)
        a(f"v_lshlrev_b32 v{vA}, 4, v{self.vL}")
        a(f"s_lshl_b32 s{self.sA}, s{sW}, 14")
        a(f"s_add_u32 s{self.sA}, s{self.sA}, {LB}")
        a(f"v_add_u32 v{vB}, s{self.sA}, v{vA}")
        for tile in range(16):
            a(f"ds_write_b128 v{vB}, v[{acc+4*tile}:{acc+4*tile+3}] offset:{tile*1024}")
        a(f"s_lshl_b32 s{self.sA}, s{self.sT}, 7")
        a(f"s_lshl_b32 s{self.sB}, s{sW}, 5")
        a(f"s_add_u32 s{self.sA}, s{self.sA}, s{self.sB}")
        a(f"v_lshlrev_b32 v{t0}, 3, v{self.vG}")
        a(f"buffer_load_dwordx2 v[14:15], v{t0}, s[44:47], s{self.sA} offen")
        barrier(a)
        a(f"s_lshl_b32 s{self.sA}, s{sW}, 12")
        a(f"s_add_u32 s{self.sA}, s{self.sA}, {LB}")
        a(f"v_add_u32 v{vB}, s{self.sA}, v{vA}")
        for src in range(4):
            for nt in range(4):
                d = 48 + 16*src + 4*nt
                a(f"ds_read_b128 v[{d}:{d+3}], v{vB} offset:{src*16384 + nt*1024}")
        a("s_waitcnt vmcnt(0)")
        a("v_lshlrev_b32 v12, 16, v14\nv_and_b32 v13, 0xffff0000, v14\nv_lshlrev_b32 v14, 16, v15\nv_and_b32 v15, 0xffff0000, v15")
        a("s_waitcnt lgkmcnt(0)")
        for nt in range(4):
            for h in range(2):
                x = 48 + 4*nt + 2*h
                a(f"v_pk_add_f32 v[{x}:{x+1}], v[{x}:{x+1}], v[{x+16}:{x+17}]")
                a(f"v_pk_add_f32 v[{x+32}:{x+33}], v[{x+32}:{x+33}], v[{x+48}:{x+49}]")
                a(f"v_pk_add_f32 v[{x}:{x+1}], v[{x}:{x+1}], v[{x+32}:{x+33}]")
                a(f"v_pk_add_f32 v[{res+4*nt+2*h}:{res+4*nt+2*h+1}], v[{x}:{x+1}], v[{12+2*h}:{13+2*h}]")
        a(f"s_lshl_b32 s{self.sA}, s{sW}, 12")
        a(f"s_add_u32 s{self.sA}, s{self.sA}, {L_BT}")
        a(f"v_add_u32 v{vB}, s{self.sA}, v{vA}")
        for nt in range(4):
            a(f"ds_write_b128 v{vB}, v[{res+4*nt}:{res+4*nt+3}] offset:{nt*1024}")

def wave_counter_addr(a, v):
    a(f"s_lshl_b32 s{S.sT}, s3, 2")
    a(f"s_add_u32 s{S.sT}, s{S.sT}, {S.LC + 4*S.C_BT}")
    a(f"v_mov_b32 v{v}, s{S.sT}")

def A_path(a, stop=None):
    for sb, nm in ((4, "xA"), (8, "wi"), (12, "ws"), (16, "gw"), (44, "wr"), (48, "out"), (56, "dbg")): load_srd(a, sb, nm)
    S.init_regs(a)
    lab = a.newlabel("Z")
    a(f"s_cmp_lg_u32 s3, 0")
    a(f"s_cbranch_scc1 {lab}")
    S.zero_counters(a, 3, 4)
    a.fence(); a.label(lab)
    a("s_waitcnt lgkmcnt(0)")
    for sb, nm in ((4, "xA"), (8, "wi"), (16, "gw"), (44, "wr"), (48, "out"), (56, "dbg")): fin_srd(a, sb, nm)
    fin_srd(a, 12, "ws", WS_SIZE)
    bar = S.TeamBarrier(S.C_ABAR, 0)
    A = A2(a, LU=L_X, LW=L_W, LW2=L_W2, LF=L_F, barrier=bar, WR="s[44:47]", WI="s[8:11]", OUT="s[48:51]")
    def after_dma(a):
        A.w_dma()
        a(f"s_mov_b32 s{S.sOFF}, {S.FL.NONCE}")
        a(f"v_mov_b32 v{S.vTMP}, 0")
        a(f"buffer_load_dword v{S.vNON}, v{S.vTMP}, s[12:15], s{S.sOFF} offen sc1")
        a("s_barrier")
    def pre_wait(a):
        A.table()
    def bar1(a):
        a(f"v_add_u32 v{S.vNON}, 0x{S.NONCE_ADD:08x}, v{S.vNON}")
        lab = a.newlabel("N")
        a("s_cmp_lg_u32 s3, 0")
        a(f"s_cbranch_scc1 {lab}")
        a("s_mov_b64 exec, 1")
        a(f"ds_write_b32 v{S.vLC}, v{S.vNON} offset:{4*S.C_NONCE}")
        a("s_mov_b64 exec, -1")
        a.fence(); a.label(lab)
        bar(a)
    regs = dict(sA=30, sB=31, sC=32, vD=[224, 225], t=[3, 4, 5, 6], vT=[9, 10, 11, 12], vS=13, vXg=[238, 239], F=240, gwf=16, xf=128, acc=160, gx=24, gacc=176)
    gen_A1(a, LA=L_A1, barrier=bar1, after_dma=after_dma, regs=regs, pre_wait=pre_wait)
    stamp(a, 4)
    a(f"s_cmp_lg_u32 s{A.sQ}, 0")
    a(f"s_cselect_b32 s{A.sKap}, 1.0, 0")
    A.w_read(A.SET1 + 32, A.LW, f"s{A.sQ}", f"s{A.sKap}")
    lab = a.newlabel("A2s2")
    a(f"s_cmp_lg_u32 s{A.sQ}, 0")
    a.fence()
    a(f"s_cbranch_scc1 {lab}")
    a(f"s_mov_b32 s{A.sKA}, 32")
    A.w_read(A.SET2 + 32, A.LW2, f"s{A.sKA}", "0")
    a.fence(); a.label(lab)
    S.publish(a, S.C_A1, S.flag256_off(S.FL.F1))
    stamp(a, 5)
    A.mmats(A.SET1, f"s{A.sQ}")
    lab = a.newlabel("A2s3")
    a(f"s_cmp_lg_u32 s{A.sQ}, 0")
    a.fence()
    a(f"s_cbranch_scc1 {lab}")
    A.mmats(A.SET2, f"s{A.sKA}")
    a.fence(); a.label(lab)
    ud = A.u_dma()
    A.frag_bases()
    lab = a.newlabel("A2p")
    a.fence()
    a("s_cmp_lg_u32 s3, 0")
    a(f"s_cbranch_scc1 {lab}")
    S.poll256(a, S.FL.F1, 128, 132, 1)
    S.arrive(a, S.C_GO1)
    a.fence(); a.label(lab)
    S.wait(a, S.C_GO1, 1, 2)
    stamp(a, 6)
    S.wait(a, S.C_B1, 4, 3)
    stamp(a, 7)
    for s in ud: a(s)
    a("s_waitcnt vmcnt(0)")
    bar(a)
    stamp(a, 8)
    A.gemm1()
    A.middle()
    stamp(a, 9)
    B = A3(a, LU=L_X, barrier=bar, OUT="s[48:51]")
    B.gtable()
    S.publish(a, S.C_A2, S.flag256_off(S.FL.F2))
    stamp(a, 10)
    B.f3(); B.frag_bases()
    B.gate_load()
    zd = B.z_dma()
    wave_counter_addr(a, 250)
    lab = a.newlabel("A3p")
    a.fence()
    a("s_cmp_lg_u32 s3, 0")
    a(f"s_cbranch_scc1 {lab}")
    S.poll256(a, S.FL.F2, 128, 132, 4)
    S.arrive(a, S.C_GO2)
    lab2 = a.newlabel("A3n")
    a("s_cmp_lg_u32 s2, 0")
    a(f"s_cbranch_scc1 {lab2}")
    a(f"s_mov_b32 s{S.sOFF}, {S.FL.NONCE}")
    a(f"v_mov_b32 v{S.vTMP}, 0")
    a("s_mov_b64 exec, 1")
    a(f"buffer_store_dword v{S.vNON}, v{S.vTMP}, s[12:15], s{S.sOFF} offen sc1")
    a("s_mov_b64 exec, -1")
    a.fence(); a.label(lab2)
    a.fence(); a.label(lab)
    S.wait(a, S.C_GO2, 1, 5)
    stamp(a, 11)
    for s in zd: a(s)
    a("s_waitcnt vmcnt(0)")
    bar(a)
    stamp(a, 12)
    B.gate_calc()
    B.gemm3()
    B.second()
    stamp(a, 13)
    L = a.newlabel("BT"); D = a.newlabel("BTd")
    a.fence(); a.label(L)
    a(f"ds_read_b32 v{S.vTMP}, v250")
    a("s_waitcnt lgkmcnt(0)")
    a(f"v_readfirstlane_b32 s{S.sT}, v{S.vTMP}")
    a(f"s_cmp_ge_u32 s{S.sT}, 1")
    a(f"s_cbranch_scc1 {D}")
    a(f"s_sub_u32 s{S.sLIM}, s{S.sLIM}, 1")
    a(f"s_cbranch_scc0 {L}")
    S.timeout(a, 6)
    a.fence(); a.label(D)
    a(f"s_lshl_b32 s{B.sA}, s3, 12")
    a(f"s_add_u32 s{B.sA}, s{B.sA}, {L_BT}")
    a(f"v_lshlrev_b32 v{B.t0}, 4, v0")
    a(f"v_add_u32 v{B.t0}, s{B.sA}, v{B.t0}")
    for nt in range(4):
        a(f"ds_read_b128 v[{B.BT+4*nt}:{B.BT+4*nt+3}], v{B.t0} offset:{nt*1024}")
    a("s_waitcnt lgkmcnt(0)")
    stamp(a, 14)
    B.mix_store()

def B_path(a):
    for sb, nm in ((4, "xA"), (8, "w1"), (12, "ws"), (16, "b1"), (40, "w2"), (44, "b2"), (56, "dbg")): load_srd(a, sb, nm)
    S.init_regs(a)
    a("s_waitcnt lgkmcnt(0)")
    for sb, nm in ((4, "xA"), (8, "w1"), (16, "b1"), (40, "w2"), (44, "b2"), (56, "dbg")): fin_srd(a, sb, nm)
    fin_srd(a, 12, "ws", WS_SIZE)
    bar = S.TeamBarrier(S.C_BBAR, 8)
    B = B2M(a)
    def after_tile0(a):
        S.wait(a, S.C_B1, 4, 9)
        S.wait(a, S.C_A1, 4, 10)
        a(f"ds_read_b32 v{S.vNON}, v{S.vLC} offset:{4*S.C_NONCE}")
        B.early()
        B.w_prefetch()
        a("s_waitcnt lgkmcnt(0)")
    gen_B1(a, XB=L_X, WR=L_W1, R=4, barrier=bar, after_issue=lambda a: a("s_barrier"),
           after_main=lambda a: S.arrive(a, S.C_B1), after_tile0=after_tile0)
    stamp(a, 5)
    def fb_off(a):
        a(f"s_mul_i32 s{S.sOFF}, s20, {S.FL.FBS}")
        a(f"s_lshl_b32 s{S.sT}, s21, 2")
        a(f"s_add_u32 s{S.sOFF}, s{S.sOFF}, s{S.sT}")
        a(f"s_add_u32 s{S.sOFF}, s{S.sOFF}, {S.FL.FB}")
    S.publish(a, S.C_BH, fb_off)
    stamp(a, 6)
    B.setup()
    wave_counter_addr(a, 250)
    lab = a.newlabel("B2p")
    a.fence()
    a("s_cmp_lg_u32 s3, 0")
    a(f"s_cbranch_scc1 {lab}")
    a(f"s_mul_i32 s{S.sOFF}, s{B.sP}, {S.FL.FBS}")
    a(f"s_add_u32 s{S.sOFF}, s{S.sOFF}, {S.FL.FB}")
    S.poll8(a, S.sOFF, 165, 166, 11)
    S.arrive(a, S.C_GOB)
    a.fence(); a.label(lab)
    S.wait(a, S.C_GOB, 1, 12)
    stamp(a, 7)
    B.main()
    stamp(a, 8)
    B.reduce(bar)
    a("s_mov_b64 exec, 1")
    a(f"ds_add_u32 v250, v{S.vONE}")
    a("s_mov_b64 exec, -1")
    stamp(a, 9)

def dbg_time(a, slot, inv):
    lab = a.newlabel("DT")
    a("v_readfirstlane_b32 s62, v0" if inv else f"s_mov_b32 s62, s{sWG}")
    a("s_cmp_lg_u32 s62, 0")
    a(f"s_cbranch_scc1 {lab}")
    a("s_and_b32 s62, s2, 0x38")
    a("s_cmp_lg_u32 s62, 0")
    a(f"s_cbranch_scc1 {lab}")
    a("s_load_dwordx2 s[56:57], s[0:1], 80")
    a("s_memrealtime s[62:63]")
    a("s_waitcnt lgkmcnt(0)")
    a("s_and_b32 s57, s57, 0xffff\ns_mov_b32 s58, 256\ns_mov_b32 s59, 0x20000")
    if inv: a("s_not_b32 s62, s62")
    a("v_mov_b32 v254, s62\nv_mov_b32 v255, 0")
    a("s_mov_b64 exec, 1")
    a(f"buffer_atomic_umax v254, v255, s[56:59], 0 offen offset:{4*slot}")
    a("s_mov_b64 exec, -1")
    a.fence(); a.label(lab)

def build(prof=False, dbgtime=False):
    a = HAsm(); a.prof = prof
    a("s_cmp_ge_u32 s2, 256")
    a("s_cbranch_scc1 L_end")
    if dbgtime: dbg_time(a, 14, True)
    stamp(a, 0, real=True); stamp(a, 1)
    a(f"v_lshrrev_b32 v1, 6, v0")
    a(f"v_readfirstlane_b32 s{sWG}, v1")
    a(f"v_and_b32 v0, 63, v0")
    a(f"s_and_b32 s3, s{sWG}, 3")
    a(f"s_cmp_ge_u32 s{sWG}, 4")
    a("s_cbranch_scc1 L_B")
    A_path(a)
    a.fence()
    a("s_branch L_fin")
    a.label("L_B")
    B_path(a)
    a.fence()
    a.label("L_fin")
    if dbgtime:
        a("s_waitcnt vmcnt(0)")
        dbg_time(a, 15, False)
    if prof:
        a("s_waitcnt vmcnt(0)")
        stamp(a, 15, real=True)
        dump_stamps(a, 16, sw=sWG, nw=8)
    a.fence()
    a.label("L_end")
    a("s_endpgm")
    k = (KNAME, a.text(), 256, 0, 100)
    return build_file([k], [(KNAME, 256, 512, LDS_SIZE)])

if __name__ == "__main__":
    open("mega.s", "w").write(build())
    open("mega_prof.s", "w").write(build(prof=True))
    open("mega_dt.s", "w").write(build(dbgtime=True))
    print("ok")
```

```python
from common import *

GELU_C1 = -2.302208198144325
GELU_C2 = GELU_C1 * 0.044715
import struct
def f2u(x): return struct.unpack('<I', struct.pack('<f', x))[0]

def gen_B1(a, exp='', XB=0, WR=65536, R=4, ringstride=None, sc=" sc1", barrier=lambda a: a("s_barrier"), vb=0, after_issue=None, after_main=None, after_tile0=None, epi_fill=None):
    ringstride = ringstride or R * 3072
    V = lambda r: r + vb
    vL = 0
    vW = [V(1), V(2), V(3)]; vT = V(4); vX = [V(5), V(6), V(7), V(8)]
    t0, t1, t2, t3, t4, t5 = V(9), V(10), V(11), V(12), V(13), V(14)
    vG, vN = V(15), V(16)
    bias = V(20)
    xf = [V(32), V(48)]
    wf = [V(64), V(76)]
    acc = V(88)
    sRT, sCT, sT0, sVal, sA, sB, sC = 20, 21, 22, 23, 24, 25, 26
    sW = 3
    a(f"s_and_b32 s{sA}, s2, 7")
    a(f"s_lshr_b32 s{sB}, s2, 3")
    a(f"s_lshr_b32 s{sRT}, s{sA}, 1")
    a(f"s_lshl_b32 s{sRT}, s{sRT}, 3")
    a(f"s_and_b32 s{sC}, s{sB}, 7")
    a(f"s_add_u32 s{sRT}, s{sRT}, s{sC}")
    a(f"s_and_b32 s{sCT}, s{sA}, 1")
    a(f"s_lshl_b32 s{sCT}, s{sCT}, 2")
    a(f"s_lshr_b32 s{sC}, s{sB}, 3")
    a(f"s_add_u32 s{sCT}, s{sCT}, s{sC}")
    a(f"s_mul_i32 s{sT0}, s{sCT}, 11")
    a(f"s_max_u32 s{sC}, s{sCT}, 6")
    a(f"s_sub_u32 s{sC}, s{sC}, 6")
    a(f"s_sub_u32 s{sT0}, s{sT0}, s{sC}")
    a(f"s_cmp_lt_u32 s{sCT}, 6")
    a(f"s_cselect_b32 s{sVal}, 11, 10")
    a(f"s_mul_i32 s{sC}, s{sW}, 3")
    a(f"s_add_u32 s{sT0}, s{sT0}, s{sC}")
    a(f"s_sub_u32 s{sVal}, s{sVal}, s{sC}")
    a(f"s_min_u32 s{sVal}, s{sVal}, 3")
    lane_decomp(a, vL, vG, vN)
    a(f"v_lshlrev_b32 v{t0}, 3, v{vG}")
    a(f"s_lshl_b32 s{sA}, s{sT0}, 5")
    for j in range(3):
        a(f"buffer_load_dwordx2 v[{xf[1]+2*j}:{xf[1]+2*j+1}], v{t0}, s[16:19], s{sA} offen offset:{32*j}")
    for c in range(4):
        a(f"s_lshl_b32 s{sA}, s{sW}, 2")
        a(f"s_add_u32 s{sA}, s{sA}, {c}")
        a(f"v_xor_b32 v{t1+c}, s{sA}, v{vL}")
        a(f"v_lshlrev_b32 v{t1+c}, 4, v{t1+c}")
    a(f"s_lshl_b32 s{sA}, s{sW}, 2")
    a(f"s_lshl_b32 s{sB}, s{sA}, 15")
    a(f"s_lshl_b32 s{sC}, s{sRT}, 10")
    a(f"s_add_u32 s{sB}, s{sB}, s{sC}")
    a(f"s_lshl_b32 s{sA}, s{sA}, 10")
    a(f"s_add_u32 s{sA}, s{sA}, {XB}")
    for mt in range(4):
        for c in range(4):
            a(f"s_add_u32 m0, s{sA}, {mt*16384 + c*1024}")
            a(f"s_add_u32 s{sC}, s{sB}, {(mt*16 + c)*32768}")
            a(f"buffer_load_dwordx4 v{t1+c}, s[4:7], s{sC} offen{MOD.x} lds")
    for i in range(3):
        a(f"v_add_u32 v{t0}, {64*i}, v{vL}")
        a(f"v_mul_u32_u24 v{t5}, 43691, v{t0}")
        a(f"v_lshrrev_b32 v{t5}, 18, v{t5}")
        a(f"v_mul_u32_u24 v{vW[i]}, 6, v{t5}")
        a(f"v_sub_u32 v{t0}, v{t0}, v{vW[i]}")
        a(f"v_and_b32 v{vW[i]}, 0x13, v{t5}")
        a(f"v_and_b32 v{vT}, 4, v{t5}")
        a(f"v_lshl_or_b32 v{vW[i]}, v{vT}, 1, v{vW[i]}")
        a(f"v_and_b32 v{vT}, 8, v{t5}")
        a(f"v_lshrrev_b32 v{vT}, 1, v{vT}")
        a(f"v_or_b32 v{vW[i]}, v{vW[i]}, v{vT}")
        a(f"v_mul_u32_u24 v{vW[i]}, 2752, v{vW[i]}")
        a(f"v_lshl_add_u32 v{vW[i]}, v{t0}, 4, v{vW[i]}")
        a(f"v_lshrrev_b32 v{t0}, 1, v{t0}")
        a(f"v_cmp_le_u32 vcc, s{sVal}, v{t0}")
        a(f"v_mov_b32 v{t5}, 0x7ff00000")
        a(f"v_cndmask_b32 v{vW[i]}, v{vW[i]}, v{t5}, vcc")
    sRing, sWO = 27, 28
    a(f"s_mul_i32 s{sRing}, s{sW}, {ringstride}")
    a(f"s_add_u32 s{sRing}, s{sRing}, {WR}")
    a(f"s_lshl_b32 s{sWO}, s{sT0}, 5")
    def wdma(ks):
        out = []
        slot = ks % R
        for i in range(3):
            s = ""
            if i == 0:
                s += f"s_add_u32 s{sC}, s{sWO}, {ks*32*2752}\n"
            s += f"s_add_u32 m0, s{sRing}, {slot*3072 + i*1024}\n"
            s += f"buffer_load_dwordx4 v{vW[i]}, s[8:11], s{sC} offen{MOD.w1} lds"
            out.append(s)
        return out
    for ks in range(R):
        for s in wdma(ks): a(s)
    if after_issue: after_issue(a)
    a(f"v_lshrrev_b32 v{t0}, 2, v{vN}")
    a(f"v_and_b32 v{t5}, 1, v{vG}")
    a(f"v_lshl_add_u32 v{t0}, v{t5}, 2, v{t0}")
    a(f"v_lshrrev_b32 v{t5}, 1, v{vG}")
    a(f"v_lshl_add_u32 v{t0}, v{t5}, 4, v{t0}")
    a(f"v_mul_u32_u24 v{t0}, 96, v{t0}")
    a(f"v_and_b32 v{t5}, 3, v{vN}")
    a(f"v_lshl_add_u32 v{t0}, v{t5}, 3, v{t0}")
    a(f"v_add_u32 v{vT}, s{sRing}, v{t0}")
    for kk in range(4):
        a(f"v_add_u32 v{t0}, {4*kk}, v{vG}")
        a(f"v_xor_b32 v{t0}, v{t0}, v{vN}")
        a(f"v_lshlrev_b32 v{t0}, 4, v{t0}")
        a(f"v_lshl_add_u32 v{vX[kk]}, v{vN}, 10, v{t0}")
        if XB: a(f"v_add_u32 v{vX[kk]}, {XB}, v{vX[kk]}")
    a(f"s_waitcnt vmcnt({16 + 3*R})")
    for j in range(3):
        for h in range(2):
            src = xf[1] + 2*j + h
            a(f"v_lshlrev_b32 v{bias + 4*j + 2*h}, 16, v{src}")
            a(f"v_and_b32 v{bias + 4*j + 2*h + 1}, 0xffff0000, v{src}")
    a(f"s_waitcnt vmcnt({3*R})")
    stamp(a, 2)
    barrier(a)
    stamp(a, 3)
    def reads(ks):
        st = ks & 1
        slot = ks % R
        out = []
        for j in range(3):
            for h in range(2):
                out.append(f"ds_read_b64_tr_b16 v[{wf[st]+4*j+2*h}:{wf[st]+4*j+2*h+1}], v{vT} offset:{slot*3072 + h*768 + j*32}")
        for mt in range(4):
            out.append(f"ds_read_b128 v[{xf[st]+4*mt}:{xf[st]+4*mt+3}], v{vX[ks&3]} offset:{mt*16384 + (ks>>2)*256}")
        return out
    a(f"s_waitcnt vmcnt({3*(R-1)})")
    for s in reads(0): a(s)
    for ks in range(16):
        st = ks & 1
        a("s_waitcnt lgkmcnt(0)")
        mf = []
        for mt in range(4):
            for j in range(3):
                d = acc + 4*(j*4 + mt)
                c = f"v[{bias+4*j}:{bias+4*j+3}]" if ks == 0 else f"v[{d}:{d+3}]"
                mf.append(f"v_mfma_f32_16x16x32_bf16 v[{d}:{d+3}], v[{wf[st]+4*j}:{wf[st]+4*j+3}], v[{xf[st]+4*mt}:{xf[st]+4*mt+3}], {c}")
        sec = []
        outstanding_after = min(16, ks + R + 1) - (ks + 2)
        if ks + R < 16 and 'nodma' not in exp:
            sec += wdma(ks + R)
        if ks + 1 < 16:
            left = min(15, ks + R) - (ks + 1)
            if 'nodma' not in exp: sec.append(f"s_waitcnt vmcnt({3*left})")
            if 'noread' not in exp: sec += reads(ks + 1)
        if 'nomfma' in exp: mf = mf[:1]
        interleave(a, mf, sec)
    if after_main: after_main(a)
    stamp(a, 4)
    cst = xf[0]
    a(f"v_mov_b32 v{cst}, 0x{f2u(GELU_C1):08x}")
    a(f"v_mov_b32 v{cst+1}, 0x{f2u(GELU_C2):08x}")
    a(f"v_mov_b32 v{cst+2}, 1.0")
    a(f"v_mov_b32 v{cst+3}, 1.0")
    a(f"v_and_b32 v{t0}, 1, v{vG}")
    a(f"v_lshlrev_b32 v{t0}, 9, v{t0}")
    a(f"v_lshrrev_b32 v{t5}, 1, v{vG}")
    a(f"v_lshl_add_u32 v{t0}, v{t5}, 8, v{t0}")
    a(f"v_lshl_add_u32 v{t0}, v{vN}, 4, v{t0}")
    a(f"s_mul_i32 s{sA}, s{sRT}, {H_P}")
    a(f"s_lshl_b32 s{sB}, s{sT0}, 11")
    a(f"s_add_u32 s{sA}, s{sA}, s{sB}")
    a(f"s_add_u32 s{sA}, s{sA}, {WS_H}")
    tmp = xf[0] + 4
    pk = xf[1]
    fill = list(epi_fill() if epi_fill else [])
    per = (len(fill) + 23) // 24
    chunks = [fill[i*per*8:(i+1)*per*8] for i in range(3)]
    skip = [None, a.newlabel("B1skip"), a.newlabel("B1skip")]
    end = a.newlabel("B1end")
    for j in range(3):
        if j > 0:
            a.fence()
            a(f"s_cmp_le_u32 s{sVal}, {j}")
            a(f"s_cbranch_scc1 {skip[j]}")
        o = pk + 8*(j & 1)
        ch = list(chunks[j])
        for mt in range(4):
            d = acc + 4*(j*4 + mt)
            for h in range(2):
                x = d + 2*h; t = tmp + 2*((mt*2 + h) & 3)
                a(f"v_pk_mul_f32 v[{t}:{t+1}], v[{x}:{x+1}], v[{x}:{x+1}]")
                a(f"v_pk_fma_f32 v[{t}:{t+1}], v[{t}:{t+1}], v[{cst}:{cst+1}], v[{cst}:{cst+1}] op_sel:[0,1,0] op_sel_hi:[1,1,0]")
                a(f"v_pk_mul_f32 v[{t}:{t+1}], v[{t}:{t+1}], v[{x}:{x+1}]")
                a(f"v_exp_f32 v{t}, v{t}")
                a(f"v_exp_f32 v{t+1}, v{t+1}")
                for _ in range(per):
                    if ch: a(ch.pop(0))
                a(f"v_pk_add_f32 v[{t}:{t+1}], v[{t}:{t+1}], v[{cst+2}:{cst+3}]")
                a(f"v_rcp_f32 v{t}, v{t}")
                a(f"v_rcp_f32 v{t+1}, v{t+1}")
                a(f"v_pk_mul_f32 v[{t}:{t+1}], v[{t}:{t+1}], v[{x}:{x+1}]")
                r = o + 4*(mt >> 1) + 2*(mt & 1) + h
                a(f"v_cvt_pk_bf16_f32 v{r}, v{t}, v{t+1}")
        for s_ in ch: a(s_)
        for pair in range(2):
            b = o + 4*pair
            a(f"v_permlane16_swap_b32 v{b}, v{b+2}")
            a(f"v_permlane16_swap_b32 v{b+1}, v{b+3}")
            a(f"s_add_u32 s{sB}, s{sA}, {j*2048 + pair*1024}")
            a(f"buffer_store_dwordx4 v[{b}:{b+3}], v{t0}, s[12:15], s{sB} offen{sc}")
        if j == 0 and after_tile0: after_tile0(a)
    a.fence()
    a(f"s_branch {end}")
    for j in (1, 2):
        a.label(skip[j])
        for s_ in chunks[j]: a(s_)
        a.fence()
    a.label(end)
    return V(136)

def kernel_B1(name, R=4, prof=False, exp=''):
    a = HAsm(); a.prof = prof
    stamp(a, 0, real=True); stamp(a, 1)
    a("s_cmp_ge_u32 s2, 256")
    a("s_cbranch_scc1 L_B1_end")
    load_srd(a, 4, "xA"); load_srd(a, 8, "w1"); load_srd(a, 12, "ws"); load_srd(a, 16, "b1")
    wave_id(a, 3, 1)
    a("s_waitcnt lgkmcnt(0)")
    fin_srd(a, 4, "xA"); fin_srd(a, 8, "w1"); fin_srd(a, 12, "ws", WS_SIZE); fin_srd(a, 16, "b1")
    nv = gen_B1(a, exp=exp, R=R)
    stamp(a, 5)
    if prof: a("s_waitcnt vmcnt(0)")
    stamp(a, 6); stamp(a, 7, real=True)
    dump_stamps(a, 8)
    a.fence()
    a.label("L_B1_end")
    a("s_endpgm")
    return (name, a.text(), nv, 0, 100), 65536 + 4*R*3072

if __name__ == "__main__":
    for R, e in ((4, 'nodma'), (4, 'noread'), (4, 'nodma_noread'), (4, 'nomfma'), (4, 'nomfma_noread')):
        k, lds = kernel_B1(KNAME, R=R, prof=True, exp=e)
        open(f"b1_{e}.s", "w").write(build_file([k], [(KNAME, 256, 256, lds)]))
        print("lds", lds, "lines", k[1].count("\n"))
```

```python
from common import *

LC = 159 * 1024
C_ABAR, C_BBAR, C_A1, C_B1, C_A2, C_BH, C_GO1, C_GO2, C_GOB, C_BT, C_NONCE, C_WR = 0, 1, 2, 3, 4, 5, 6, 7, 8, 9, 13, 14
vLC, vONE, vTMP, vNON = 252, 253, 254, 251
sLIM, sT, sOFF = 60, 61, 63
SPIN = 100000
NONCE_ADD = 0x9E3779B9
class FL:
    FS = 32
    R = 8
    RS = 64 * 32
    F1 = WS_FL
    F2 = WS_FL + (16 << 10)
    FB = WS_FL + (32 << 10)
    FBS = 128
    NONCE = WS_FL + (48 << 10)

def init_regs(a):
    a(f"v_mov_b32 v{vLC}, {LC}")
    a(f"v_mov_b32 v{vONE}, 1")
    a(f"s_mov_b32 s{sLIM}, {SPIN}")

def zero_counters(a, t0, t1):
    a(f"v_lshlrev_b32 v{t0}, 2, v0")
    a(f"v_add_u32 v{t0}, {LC}, v{t0}")
    a(f"v_mov_b32 v{t1}, 0")
    a(f"ds_write_b32 v{t0}, v{t1}")
    a("s_waitcnt lgkmcnt(0)")

def timeout(a, code):
    a(f"s_mov_b32 s{sLIM}, 0")
    a(f"v_mov_b32 v{vTMP}, {0x100 + code}")
    a(f"v_mov_b32 v255, 0")
    a(f"buffer_store_dword v{vTMP}, v255, s[56:59], 0 offen offset:{4*(code & 15)}")

def arrive(a, c):
    a("s_mov_b64 exec, 1")
    a(f"ds_add_u32 v{vLC}, v{vONE} offset:{4*c}")
    a("s_mov_b64 exec, -1")

def wait(a, c, n, code):
    L = a.newlabel("W"); D = a.newlabel("Wd")
    a.fence()
    a.label(L)
    a(f"ds_read_b32 v{vTMP}, v{vLC} offset:{4*c}")
    a("s_waitcnt lgkmcnt(0)")
    a(f"v_readfirstlane_b32 s{sT}, v{vTMP}")
    a(f"s_cmp_ge_u32 s{sT}, {n}")
    a(f"s_cbranch_scc1 {D}")
    a(f"s_sub_u32 s{sLIM}, s{sLIM}, 1")
    a(f"s_cbranch_scc0 {L}")
    timeout(a, code)
    a.fence()
    a.label(D)

class TeamBarrier:
    def __init__(self, c, code):
        self.c = c; self.k = 0; self.code = code
    def __call__(self, a):
        self.k += 1
        arrive(a, self.c)
        wait(a, self.c, 4*self.k, self.code)

def publish(a, c, set_off, R=1):
    D = a.newlabel("P")
    a("s_waitcnt vmcnt(0)")
    a("s_mov_b64 exec, 1")
    a(f"ds_add_rtn_u32 v{vTMP}, v{vLC}, v{vONE} offset:{4*c}")
    a("s_waitcnt lgkmcnt(0)")
    a(f"v_readfirstlane_b32 s{sT}, v{vTMP}")
    a(f"s_cmp_lg_u32 s{sT}, 3")
    a(f"s_cbranch_scc1 {D}")
    set_off(a)
    if R == 1:
        a(f"v_mov_b32 v{vTMP}, 0")
    else:
        a(f"s_mov_b64 exec, {(1 << R) - 1}")
        a(f"v_mul_u32_u24 v{vTMP}, {FL.RS}, v0")
    a(f"buffer_store_dword v{vNON}, v{vTMP}, s[12:15], s{sOFF} offen sc1")
    a.fence()
    a.label(D)
    a("s_mov_b64 exec, -1")

def flag256_off(base):
    def f(a):
        a(f"s_lshr_b32 s{sOFF}, s2, 2")
        a(f"s_mul_i32 s{sOFF}, s{sOFF}, {FL.FS}")
        a(f"s_and_b32 s{sT}, s2, 3")
        a(f"s_lshl_b32 s{sT}, s{sT}, 2")
        a(f"s_add_u32 s{sOFF}, s{sOFF}, s{sT}")
        a(f"s_add_u32 s{sOFF}, s{sOFF}, {base}")
    return f

def poll256(a, base, vD, vO, code):
    L = a.newlabel("Q"); D = a.newlabel("Qd")
    a(f"v_mul_u32_u24 v{vO}, {FL.FS}, v0")
    a(f"s_and_b32 s{sOFF}, s2, {FL.R - 1}")
    a(f"s_mul_i32 s{sOFF}, s{sOFF}, {FL.RS}")
    a(f"s_add_u32 s{sOFF}, s{sOFF}, {base}")
    a.fence()
    a.label(L)
    a(f"buffer_load_dwordx4 v[{vD}:{vD+3}], v{vO}, s[12:15], s{sOFF} offen sc1")
    a("s_waitcnt vmcnt(0)")
    for i in range(4): a(f"v_xor_b32 v{vD+i}, v{vNON}, v{vD+i}")
    a(f"v_or3_b32 v{vD}, v{vD}, v{vD+1}, v{vD+2}")
    a(f"v_or_b32 v{vD}, v{vD}, v{vD+3}")
    a(f"v_cmp_ne_u32 vcc, 0, v{vD}")
    a(f"s_cmp_eq_u64 vcc, 0")
    a(f"s_cbranch_scc1 {D}")
    a(f"s_sub_u32 s{sLIM}, s{sLIM}, 1")
    a(f"s_cbranch_scc0 {L}")
    timeout(a, code)
    a.fence()
    a.label(D)

def poll8(a, sBase, vD, vO, code):
    L = a.newlabel("Q"); D = a.newlabel("Qd")
    a(f"v_lshlrev_b32 v{vO}, 2, v0")
    a("s_mov_b64 exec, 0xff")
    a.fence()
    a.label(L)
    a(f"buffer_load_dword v{vD}, v{vO}, s[12:15], s{sBase} offen sc1")
    a("s_waitcnt vmcnt(0)")
    a(f"v_cmp_ne_u32 vcc, v{vNON}, v{vD}")
    a(f"s_cmp_eq_u64 vcc, 0")
    a(f"s_cbranch_scc1 {D}")
    a(f"s_sub_u32 s{sLIM}, s{sLIM}, 1")
    a(f"s_cbranch_scc0 {L}")
    timeout(a, code)
    a.fence()
    a.label(D)
    a("s_mov_b64 exec, -1")
```

```python
import sys
from common import *
import sync as S
from a1 import gen_A1, f2u
from a2 import A2
from a3 import A3
from b1 import gen_B1

L_X = 0
L_W1 = 64 << 10
L_A1 = 112 << 10
L_W = 120 << 10
L_W2 = 128 << 10
L_F = 136 << 10
L_B2 = 64 << 10
L_BT = 128 << 10
LDS_SIZE = 160 << 10
sWG = 29
class PF:
    mall = True
    l2 = True

class B2M:
    sP, sT, sA, sB, sC, sH, sWO, sRing = 30, 31, 32, 33, 34, 35, 36, 37
    vD = [160, 161]
    e0, e1, e2 = 162, 163, 164
    vL, vG, vN = 0, 1, 2
    vT = [5, 6, 7, 8]; vH = 9
    t0, t1, t2 = 10, 11, 12
    wf = [16, 32]; hf = 48
    def __init__(self, a, LB=L_B2, R=5, HD=3, ld_sc=" sc1"):
        self.a = a; self.LB = LB; self.R = R; self.HD = HD; self.ld_sc = ld_sc
        self.acc = self.hf + 16*HD
        self.seq = []
    def decode(self):
        a = self.a
        a(f"s_and_b32 s{self.sP}, s2, 7")
        a(f"s_lshl_b32 s{self.sP}, s{self.sP}, 2")
        a(f"s_lshr_b32 s{self.sA}, s2, 3")
        a(f"s_lshr_b32 s{self.sT}, s{self.sA}, 2")
        a(f"s_and_b32 s{self.sA}, s{self.sA}, 3")
        a(f"s_add_u32 s{self.sP}, s{self.sP}, s{self.sA}")
    def early(self):
        a = self.a; sW = 3; t0, t1, t2 = self.e0, self.e1, self.e2
        self.decode()
        for par in range(2):
            a(f"v_lshrrev_b32 v{t0}, 3, v{self.vL}")
            a(f"v_bfe_u32 v{t1}, v{t0}, 1, 1")
            if par: a(f"v_or_b32 v{t1}, 2, v{t1}")
            a(f"v_bfe_u32 v{t2}, v{self.vL}, 1, 2")
            a(f"v_xor_b32 v{t1}, v{t1}, v{t2}")
            a(f"v_lshlrev_b32 v{t1}, 5, v{t1}")
            a(f"v_and_b32 v{t2}, 1, v{self.vL}")
            a(f"v_lshl_add_u32 v{t1}, v{t2}, 4, v{t1}")
            a(f"v_lshl_add_u32 v{self.vD[par]}, v{t0}, 10, v{t1}")
        a(f"s_mul_i32 s{self.sWO}, s{sW}, {11*32*1024}")
        a(f"s_lshl_b32 s{self.sA}, s{self.sT}, 7")
        a(f"s_add_u32 s{self.sWO}, s{self.sWO}, s{self.sA}")
        a(f"s_mul_i32 s{self.sRing}, s{sW}, {self.R*4096}")
        a(f"s_add_u32 s{self.sRing}, s{self.sRing}, {self.LB}")
    def wdma(self, ks):
        out = []
        slot = ks % self.R
        for i in range(4):
            s = f"s_add_u32 s{self.sC}, s{self.sWO}, {(ks*32 + 8*i)*1024}\n"
            s += f"s_add_u32 m0, s{self.sRing}, {slot*4096 + i*1024}\n"
            s += f"buffer_load_dwordx4 v{self.vD[i&1]}, s[40:43], s{self.sC} offen{MOD.w2} lds"
            out.append(s)
        return out
    def w_prefetch(self):
        for ks in range(self.R):
            for s in self.wdma(ks): self.a(s)
    def hload(self, ks):
        b = self.hf + 16*(ks % self.HD)
        out = []
        for nt in range(4):
            s = ""
            if nt == 0: s += f"s_add_u32 s{self.sB}, s{self.sH}, {ks*4096}\n"
            s += f"buffer_load_dwordx4 v[{b+4*nt}:{b+4*nt+3}], v{self.vH}, s[12:15], s{self.sB} offen offset:{nt*512}{self.ld_sc}"
            out.append(s)
        return out
    def setup(self):
        a = self.a; sW = 3; t0, t1, t2 = self.t0, self.t1, self.t2
        vG, vN = self.vG, self.vN
        lane_decomp(a, self.vL, vG, vN)
        a(f"v_lshrrev_b32 v{t0}, 1, v{vG}")
        a(f"v_lshlrev_b32 v{self.vH}, 11, v{t0}")
        a(f"v_and_b32 v{t0}, 1, v{vG}")
        a(f"v_lshl_add_u32 v{self.vH}, v{t0}, 8, v{self.vH}")
        a(f"v_lshl_add_u32 v{self.vH}, v{vN}, 4, v{self.vH}")
        a(f"s_mul_i32 s{self.sH}, s{self.sP}, {H_P}")
        a(f"s_mul_i32 s{self.sA}, s{sW}, {11*4096}")
        a(f"s_add_u32 s{self.sH}, s{self.sH}, s{self.sA}")
        a(f"s_add_u32 s{self.sH}, s{self.sH}, {WS_H}")
        a(f"v_lshrrev_b32 v{t0}, 2, v{vN}")
        a(f"v_lshl_add_u32 v{t1}, v{vG}, 3, v{t0}")
        a(f"v_lshlrev_b32 v{t1}, 7, v{t1}")
        a(f"v_lshrrev_b32 v{t0}, 1, v{t0}")
        a(f"v_and_b32 v{t2}, 1, v{vG}")
        a(f"v_lshl_add_u32 v{t0}, v{t2}, 1, v{t0}")
        a(f"v_lshl_add_u32 v{t1}, v{t0}, 5, v{t1}")
        a(f"v_and_b32 v{t0}, 3, v{vN}")
        a(f"v_lshl_add_u32 v{t1}, v{t0}, 3, v{t1}")
        for dt in range(4):
            a(f"v_xor_b32 v{self.vT[dt]}, {dt*32}, v{t1}")
            a(f"v_add_u32 v{self.vT[dt]}, s{self.sRing}, v{self.vT[dt]}")
    def main(self):
        a = self.a; sW = 3; R, HD = self.R, self.HD
        seq = self.seq; wf, hf, acc = self.wf, self.hf, self.acc
        NK = 11
        for ks in range(HD):
            for s in self.hload(ks): a(s); seq.append(('h', ks))
        def reads(ks):
            st = ks & 1; slot = ks % R
            return [f"ds_read_b64_tr_b16 v[{wf[st]+4*dt+2*h}:{wf[st]+4*dt+2*h+1}], v{self.vT[dt]} offset:{slot*4096 + h*512}" for dt in range(4) for h in range(2)]
        def wait_for(kind, ks):
            ids = [i for i, e in enumerate(seq) if e == (kind, ks)]
            if not ids: return None
            return f"s_waitcnt vmcnt({len(seq) - 1 - max(ids)})"
        for s in reads(0): a(s)
        for ks in range(NK):
            st = ks & 1
            a(wait_for('h', ks))
            a("s_waitcnt lgkmcnt(0)")
            if ks == NK - 1:
                lab = a.newlabel("B2z")
                a.fence()
                a(f"s_cmp_lg_u32 s{sW}, 3")
                a(f"s_cbranch_scc1 {lab}")
                b = hf + 16*(ks % HD)
                for r in range(16): a(f"v_mov_b32 v{b+r}, 0")
                a.fence()
                a.label(lab)
            mf = []
            b = hf + 16*(ks % HD)
            for dt in range(4):
                for nt in range(4):
                    d = acc + 4*(dt*4 + nt)
                    c = "0" if ks == 0 else f"v[{d}:{d+3}]"
                    mf.append(f"v_mfma_f32_16x16x32_bf16 v[{d}:{d+3}], v[{wf[st]+4*dt}:{wf[st]+4*dt+3}], v[{b+4*nt}:{b+4*nt+3}], {c}")
            w = self.wdma(ks + R) if ks + R < NK else []
            pre = []
            for s in w:
                pre.append(s); seq.append(('w', ks + R))
            if ks + 1 < NK:
                x = wait_for('w', ks + 1)
                if x: pre.append(x)
                pre += reads(ks + 1)
            post = []
            if ks + HD < NK:
                for s in self.hload(ks + HD):
                    post.append(s); seq.append(('h', ks + HD))
            interleave(a, mf, pre)
            for s in post: a(s)
    def reduce(self, barrier):
        a = self.a; acc = self.acc; sW = 3; LB = self.LB
        vA = 10; vB = 11; t0 = 12; res = 16
        barrier(a)
        a(f"v_lshlrev_b32 v{vA}, 4, v{self.vL}")
        a(f"s_lshl_b32 s{self.sA}, s{sW}, 14")
        a(f"s_add_u32 s{self.sA}, s{self.sA}, {LB}")
        a(f"v_add_u32 v{vB}, s{self.sA}, v{vA}")
        for tile in range(16):
            a(f"ds_write_b128 v{vB}, v[{acc+4*tile}:{acc+4*tile+3}] offset:{tile*1024}")
        a(f"s_lshl_b32 s{self.sA}, s{self.sT}, 7")
        a(f"s_lshl_b32 s{self.sB}, s{sW}, 5")
        a(f"s_add_u32 s{self.sA}, s{self.sA}, s{self.sB}")
        a(f"v_lshlrev_b32 v{t0}, 3, v{self.vG}")
        a(f"buffer_load_dwordx2 v[14:15], v{t0}, s[44:47], s{self.sA} offen")
        barrier(a)
        a(f"s_lshl_b32 s{self.sA}, s{sW}, 12")
        a(f"s_add_u32 s{self.sA}, s{self.sA}, {LB}")
        a(f"v_add_u32 v{vB}, s{self.sA}, v{vA}")
        for src in range(4):
            for nt in range(4):
                d = 48 + 16*src + 4*nt
                a(f"ds_read_b128 v[{d}:{d+3}], v{vB} offset:{src*16384 + nt*1024}")
        a("s_waitcnt vmcnt(0)")
        a("v_lshlrev_b32 v12, 16, v14\nv_and_b32 v13, 0xffff0000, v14\nv_lshlrev_b32 v14, 16, v15\nv_and_b32 v15, 0xffff0000, v15")
        a("s_waitcnt lgkmcnt(0)")
        for nt in range(4):
            for h in range(2):
                x = 48 + 4*nt + 2*h
                a(f"v_pk_add_f32 v[{x}:{x+1}], v[{x}:{x+1}], v[{x+16}:{x+17}]")
                a(f"v_pk_add_f32 v[{x+32}:{x+33}], v[{x+32}:{x+33}], v[{x+48}:{x+49}]")
                a(f"v_pk_add_f32 v[{x}:{x+1}], v[{x}:{x+1}], v[{x+32}:{x+33}]")
                a(f"v_pk_add_f32 v[{res+4*nt+2*h}:{res+4*nt+2*h+1}], v[{x}:{x+1}], v[{12+2*h}:{13+2*h}]")
        a(f"s_lshl_b32 s{self.sA}, s{sW}, 12")
        a(f"s_add_u32 s{self.sA}, s{self.sA}, {L_BT}")
        a(f"v_add_u32 v{vB}, s{self.sA}, v{vA}")
        for nt in range(4):
            a(f"ds_write_b128 v{vB}, v[{res+4*nt}:{res+4*nt+3}] offset:{nt*1024}")

def wave_counter_addr(a, v):
    a(f"s_lshl_b32 s{S.sT}, s3, 2")
    a(f"s_add_u32 s{S.sT}, s{S.sT}, {S.LC + 4*S.C_BT}")
    a(f"v_mov_b32 v{v}, s{S.sT}")

def A_path(a, stop=None):
    for sb, nm in ((4, "xA"), (8, "wi"), (12, "ws"), (16, "gw"), (44, "wr"), (48, "out"), (56, "dbg"), (36, "w1"), (40, "w2")): load_srd(a, sb, nm)
    S.init_regs(a)
    lab = a.newlabel("Z")
    a(f"s_cmp_lg_u32 s3, 0")
    a(f"s_cbranch_scc1 {lab}")
    S.zero_counters(a, 3, 4)
    a.fence(); a.label(lab)
    a("s_waitcnt lgkmcnt(0)")
    for sb, nm in ((4, "xA"), (8, "wi"), (16, "gw"), (44, "wr"), (48, "out"), (56, "dbg"), (36, "w1"), (40, "w2")): fin_srd(a, sb, nm)
    fin_srd(a, 12, "ws", WS_SIZE)
    a("s_barrier")
    bar = S.TeamBarrier(S.C_ABAR, 0)
    A = A2(a, LU=L_X, LW=L_W, LW2=L_W2, LF=L_F, barrier=bar, WR="s[44:47]", WI="s[8:11]", OUT="s[48:51]")
    def after_dma(a):
        A.w_dma()
        a(f"s_mov_b32 s{S.sOFF}, {S.FL.NONCE}")
        a(f"v_mov_b32 v{S.vTMP}, 0")
        a(f"buffer_load_dword v{S.vNON}, v{S.vTMP}, s[12:15], s{S.sOFF} offen sc1")
        if PF.mall:
            lab = a.newlabel("PF")
            a("s_cmp_ge_u32 s3, 2")
            a(f"s_cbranch_scc1 {lab}")
            a("s_mul_i32 s62, s2, 43*128")
            a("v_lshlrev_b32 v248, 7, v0")
            a("s_mov_b32 exec_hi, 0x7ff")
            a("s_cmp_eq_u32 s3, 0")
            a(f"s_cbranch_scc1 {lab}_1")
            a("buffer_load_dword v249, v248, s[40:43], s62 offen")
            a(f"s_branch {lab}_2")
            a.label(f"{lab}_1")
            a("buffer_load_dword v249, v248, s[36:39], s62 offen")
            a.label(f"{lab}_2")
            a("s_mov_b64 exec, -1")
            a.fence(); a.label(lab)
    def pre_wait(a):
        A.table()
    def bar1(a):
        a(f"v_add_u32 v{S.vNON}, 0x{S.NONCE_ADD:08x}, v{S.vNON}")
        lab = a.newlabel("N")
        a("s_cmp_lg_u32 s3, 0")
        a(f"s_cbranch_scc1 {lab}")
        a("s_mov_b64 exec, 1")
        a(f"ds_write_b32 v{S.vLC}, v{S.vNON} offset:{4*S.C_NONCE}")
        a("s_mov_b64 exec, -1")
        a.fence(); a.label(lab)
        bar(a)
    regs = dict(sA=30, sB=31, sC=32, vD=[224, 225], t=[3, 4, 5, 6], vT=[9, 10, 11, 12], vS=13, vXg=[238, 239], F=240, gwf=16, xf=128, acc=160, gx=24, gacc=176)
    gen_A1(a, LA=L_A1, barrier=bar1, after_dma=after_dma, regs=regs, pre_wait=pre_wait)
    stamp(a, 4)
    S.publish(a, S.C_A1, S.flag256_off(S.FL.F1), R=S.FL.R)
    stamp(a, 5)
    if PF.l2:
        a("s_lshr_b32 s62, s2, 3")
        a("s_mul_i32 s62, s62, 344*128")
        a("s_mul_i32 s61, s3, 86*128")
        a("s_add_u32 s62, s62, s61")
        a("v_lshlrev_b32 v248, 7, v0")
        a("buffer_load_dword v249, v248, s[40:43], s62 offen")
        a("s_add_u32 s62, s62, 8192")
        a("s_mov_b64 exec, 0x3fffff")
        a("buffer_load_dword v247, v248, s[40:43], s62 offen")
        a("s_mov_b64 exec, -1")
    a(f"s_cmp_lg_u32 s{A.sQ}, 0")
    a(f"s_cselect_b32 s{A.sKap}, 1.0, 0")
    A.w_read(A.SET1 + 32, A.LW, f"s{A.sQ}", f"s{A.sKap}")
    lab = a.newlabel("A2s2")
    a(f"s_cmp_lg_u32 s{A.sQ}, 0")
    a.fence()
    a(f"s_cbranch_scc1 {lab}")
    a(f"s_mov_b32 s{A.sKA}, 32")
    A.w_read(A.SET2 + 32, A.LW2, f"s{A.sKA}", "0")
    a.fence(); a.label(lab)
    a("s_waitcnt lgkmcnt(0)")
    S.arrive(a, S.C_WR)
    A.mmats(A.SET1, f"s{A.sQ}")
    lab = a.newlabel("A2s3")
    a(f"s_cmp_lg_u32 s{A.sQ}, 0")
    a.fence()
    a(f"s_cbranch_scc1 {lab}")
    A.mmats(A.SET2, f"s{A.sKA}")
    a.fence(); a.label(lab)
    ud = A.u_dma()
    A.frag_bases()
    lab = a.newlabel("A2p")
    a.fence()
    a("s_cmp_lg_u32 s3, 0")
    a(f"s_cbranch_scc1 {lab}")
    S.poll256(a, S.FL.F1, 128, 132, 1)
    S.arrive(a, S.C_GO1)
    a.fence(); a.label(lab)
    S.wait(a, S.C_GO1, 1, 2)
    stamp(a, 6)
    S.wait(a, S.C_B1, 4, 3)
    stamp(a, 7)
    for s in ud: a(s)
    a("s_waitcnt vmcnt(0)")
    bar(a)
    stamp(a, 8)
    A.gemm1()
    A.middle()
    stamp(a, 9)
    B = A3(a, LU=L_X, barrier=bar, OUT="s[48:51]")
    S.publish(a, S.C_A2, S.flag256_off(S.FL.F2), R=S.FL.R)
    stamp(a, 10)
    B.gtable()
    B.f3(); B.frag_bases()
    B.gate_load()
    zd = B.z_dma()
    wave_counter_addr(a, 250)
    lab = a.newlabel("A3p")
    a.fence()
    a("s_cmp_lg_u32 s3, 0")
    a(f"s_cbranch_scc1 {lab}")
    S.poll256(a, S.FL.F2, 128, 132, 4)
    S.arrive(a, S.C_GO2)
    lab2 = a.newlabel("A3n")
    a("s_cmp_lg_u32 s2, 0")
    a(f"s_cbranch_scc1 {lab2}")
    a(f"s_mov_b32 s{S.sOFF}, {S.FL.NONCE}")
    a(f"v_mov_b32 v{S.vTMP}, 0")
    a("s_mov_b64 exec, 1")
    a(f"buffer_store_dword v{S.vNON}, v{S.vTMP}, s[12:15], s{S.sOFF} offen sc1")
    a("s_mov_b64 exec, -1")
    a.fence(); a.label(lab2)
    a.fence(); a.label(lab)
    S.wait(a, S.C_GO2, 1, 5)
    stamp(a, 11)
    for s in zd: a(s)
    a("s_waitcnt vmcnt(0)")
    bar(a)
    stamp(a, 12)
    B.gate_calc()
    B.gemm3()
    B.second()
    stamp(a, 13)
    L = a.newlabel("BT"); D = a.newlabel("BTd")
    a.fence(); a.label(L)
    a(f"ds_read_b32 v{S.vTMP}, v250")
    a("s_waitcnt lgkmcnt(0)")
    a(f"v_readfirstlane_b32 s{S.sT}, v{S.vTMP}")
    a(f"s_cmp_ge_u32 s{S.sT}, 1")
    a(f"s_cbranch_scc1 {D}")
    a(f"s_sub_u32 s{S.sLIM}, s{S.sLIM}, 1")
    a(f"s_cbranch_scc0 {L}")
    S.timeout(a, 6)
    a.fence(); a.label(D)
    a(f"s_lshl_b32 s{B.sA}, s3, 12")
    a(f"s_add_u32 s{B.sA}, s{B.sA}, {L_BT}")
    a(f"v_lshlrev_b32 v{B.t0}, 4, v0")
    a(f"v_add_u32 v{B.t0}, s{B.sA}, v{B.t0}")
    for nt in range(4):
        a(f"ds_read_b128 v[{B.BT+4*nt}:{B.BT+4*nt+3}], v{B.t0} offset:{nt*1024}")
    a("s_waitcnt lgkmcnt(0)")
    stamp(a, 14)
    B.mix_store()

def B_path(a):
    for sb, nm in ((4, "xA"), (8, "w1"), (12, "ws"), (16, "b1"), (40, "w2"), (44, "b2"), (56, "dbg")): load_srd(a, sb, nm)
    S.init_regs(a)
    a("s_waitcnt lgkmcnt(0)")
    stamp(a, 10)
    for sb, nm in ((4, "xA"), (8, "w1"), (16, "b1"), (40, "w2"), (44, "b2"), (56, "dbg")): fin_srd(a, sb, nm)
    fin_srd(a, 12, "ws", WS_SIZE)
    a("s_barrier")
    stamp(a, 11)
    bar = S.TeamBarrier(S.C_BBAR, 8)
    B = B2M(a)
    def after_main(a):
        S.arrive(a, S.C_B1)
        B.early()
        S.wait(a, S.C_B1, 4, 9)
        S.wait(a, S.C_WR, 4, 10)
        a(f"ds_read_b32 v{S.vNON}, v{S.vLC} offset:{4*S.C_NONCE}")
    def epi_fill():
        out = []
        for ks in range(B.R): out += B.wdma(ks)
        return out
    gen_B1(a, XB=L_X, WR=L_W1, R=4, barrier=bar, after_issue=lambda a: stamp(a, 12),
           after_main=after_main, epi_fill=epi_fill)
    a("s_waitcnt lgkmcnt(0)")
    stamp(a, 5)
    def fb_off(a):
        a(f"s_mul_i32 s{S.sOFF}, s20, {S.FL.FBS}")
        a(f"s_lshl_b32 s{S.sT}, s21, 2")
        a(f"s_add_u32 s{S.sOFF}, s{S.sOFF}, s{S.sT}")
        a(f"s_add_u32 s{S.sOFF}, s{S.sOFF}, {S.FL.FB}")
    S.publish(a, S.C_BH, fb_off)
    stamp(a, 6)
    B.setup()
    wave_counter_addr(a, 250)
    lab = a.newlabel("B2p")
    a.fence()
    a("s_cmp_lg_u32 s3, 0")
    a(f"s_cbranch_scc1 {lab}")
    a(f"s_mul_i32 s{S.sOFF}, s{B.sP}, {S.FL.FBS}")
    a(f"s_add_u32 s{S.sOFF}, s{S.sOFF}, {S.FL.FB}")
    S.poll8(a, S.sOFF, 165, 166, 11)
    S.arrive(a, S.C_GOB)
    a.fence(); a.label(lab)
    S.wait(a, S.C_GOB, 1, 12)
    stamp(a, 7)
    B.main()
    stamp(a, 8)
    B.reduce(bar)
    a("s_mov_b64 exec, 1")
    a(f"ds_add_u32 v250, v{S.vONE}")
    a("s_mov_b64 exec, -1")
    stamp(a, 9)

def dbg_time(a, slot, inv):
    lab = a.newlabel("DT")
    a("v_readfirstlane_b32 s62, v0" if inv else f"s_mov_b32 s62, s{sWG}")
    a("s_cmp_lg_u32 s62, 0")
    a(f"s_cbranch_scc1 {lab}")
    a("s_and_b32 s62, s2, 0x38")
    a("s_cmp_lg_u32 s62, 0")
    a(f"s_cbranch_scc1 {lab}")
    a("s_load_dwordx2 s[56:57], s[0:1], 80")
    a("s_memrealtime s[62:63]")
    a("s_waitcnt lgkmcnt(0)")
    a("s_and_b32 s57, s57, 0xffff\ns_mov_b32 s58, 256\ns_mov_b32 s59, 0x20000")
    if inv: a("s_not_b32 s62, s62")
    a("v_mov_b32 v254, s62\nv_mov_b32 v255, 0")
    a("s_mov_b64 exec, 1")
    a(f"buffer_atomic_umax v254, v255, s[56:59], 0 offen offset:{4*slot}")
    a("s_mov_b64 exec, -1")
    a.fence(); a.label(lab)

def A_stub(a):
    for sb, nm in ((12, "ws"), (56, "dbg")): load_srd(a, sb, nm)
    S.init_regs(a)
    lab = a.newlabel("Z")
    a(f"s_cmp_lg_u32 s3, 0")
    a(f"s_cbranch_scc1 {lab}")
    S.zero_counters(a, 3, 4)
    a.fence(); a.label(lab)
    a("s_waitcnt lgkmcnt(0)")
    fin_srd(a, 56, "dbg"); fin_srd(a, 12, "ws", WS_SIZE)
    a(f"s_mov_b32 s{S.sOFF}, {S.FL.NONCE}")
    a(f"v_mov_b32 v{S.vTMP}, 0")
    a(f"buffer_load_dword v{S.vNON}, v{S.vTMP}, s[12:15], s{S.sOFF} offen sc1")
    a("s_barrier")
    a("s_waitcnt vmcnt(0)")
    a(f"v_add_u32 v{S.vNON}, 0x{S.NONCE_ADD:08x}, v{S.vNON}")
    a("s_mov_b64 exec, 1")
    a(f"ds_write_b32 v{S.vLC}, v{S.vNON} offset:{4*S.C_NONCE}")
    a("s_mov_b64 exec, -1")
    S.arrive(a, S.C_WR)
    lab2 = a.newlabel("A3n")
    a("s_cmp_lg_u32 s2, 0")
    a(f"s_cbranch_scc1 {lab2}")
    S.wait(a, S.C_BT, 1, 6)
    a(f"s_mov_b32 s{S.sOFF}, {S.FL.NONCE}")
    a(f"v_mov_b32 v{S.vTMP}, 0")
    a("s_mov_b64 exec, 1")
    a(f"buffer_store_dword v{S.vNON}, v{S.vTMP}, s[12:15], s{S.sOFF} offen sc1")
    a("s_mov_b64 exec, -1")
    a.fence(); a.label(lab2)

def B_stub(a):
    for sb, nm in ((12, "ws"), (56, "dbg")): load_srd(a, sb, nm)
    S.init_regs(a)
    a("s_waitcnt lgkmcnt(0)")
    fin_srd(a, 56, "dbg"); fin_srd(a, 12, "ws", WS_SIZE)
    a("s_barrier")
    S.arrive(a, S.C_B1)
    wave_counter_addr(a, 250)
    a("s_mov_b64 exec, 1")
    a(f"ds_add_u32 v250, v{S.vONE}")
    a("s_mov_b64 exec, -1")

def build(prof=False, dbgtime=False, only=None, prefetch=True):
    a = HAsm(); a.prof = prof
    a("s_cmp_ge_u32 s2, 256")
    a("s_cbranch_scc1 L_end")
    if dbgtime: dbg_time(a, 14, True)
    stamp(a, 0, real=True); stamp(a, 1)
    if prefetch:
        a("s_getpc_b64 s[52:53]")
        a.label("L_pc")
        a("v_lshlrev_b32 v1, 7, v0")
        a("s_and_b32 s53, s53, 0xffff")
        a("s_mov_b32 s54, L_end-L_pc")
        a("s_mov_b32 s55, 0x20000")
        a("buffer_load_dword v249, v1, s[52:55], 0 offen")
    a(f"v_lshrrev_b32 v1, 6, v0")
    a(f"v_readfirstlane_b32 s{sWG}, v1")
    a(f"v_and_b32 v0, 63, v0")
    a(f"s_and_b32 s3, s{sWG}, 3")
    a(f"s_cmp_ge_u32 s{sWG}, 4")
    a("s_cbranch_scc1 L_B")
    (A_stub if only == 'B' else A_path)(a)
    a.fence()
    a("s_branch L_fin")
    a.label("L_B")
    (B_stub if only == 'A' else B_path)(a)
    a.fence()
    a.label("L_fin")
    if dbgtime:
        a("s_waitcnt vmcnt(0)")
        dbg_time(a, 15, False)
    if prof:
        a("s_waitcnt vmcnt(0)")
        stamp(a, 15, real=True)
        dump_stamps(a, 16, sw=sWG, nw=8)
    a.fence()
    a.label("L_end")
    a("s_endpgm")
    k = (KNAME, a.text(), 256, 0, 100)
    return build_file([k], [(KNAME, 256, 512, LDS_SIZE)])

def variant(name, prof=True, mall=True, l2=False, only=None, **mods):
    PF.mall = mall; PF.l2 = l2
    for k in ("x", "w1", "w2", "W", "out"): setattr(MOD, k, mods.get(k, ""))
    open(f"exp/{name}.s", "w").write(build(prof=prof, only=only))

if __name__ == "__main__":
    nt = " nt"
    variant("mega", prof=False)
    variant("mega_prof")
    variant("mega_prof_A", only='A')
    variant("mega_prof_B", only='B')
    variant("mp_W", W=nt)
    variant("mp_Wx", W=nt, x=nt)
    variant("mp_Wxo", W=nt, x=nt, out=nt)
    variant("mp_all", W=nt, x=nt, w1=nt, w2=nt, mall=False)
    variant("mp_allm", W=nt, x=nt, w1=nt, w2=nt, mall=True)
    variant("mp_Wxw1", W=nt, x=nt, w1=nt, mall=True)
```
